```python
import torch

def _softmax(x, axis=-1):
    return torch.softmax(x, dim=axis)
def _gelu(x):
    return torch.nn.functional.gelu(x, approximate="tanh")
def _silu(x):
    return torch.nn.functional.silu(x)
def _sigmoid(x):
    return torch.sigmoid(x)
def _layernorm(x, axis=-1, eps=1e-5):
    m = x.mean(dim=axis, keepdim=True)
    v = x.var(dim=axis, keepdim=True, unbiased=False)
    return (x - m) / torch.sqrt(v + eps)
def _scatter_add(tgt, idx, src, axis=0):
    return tgt.clone().index_add_(axis, idx, src)
def _segment_sum(src, seg, n):
    out = torch.zeros((n,) + src.shape[1:], dtype=src.dtype)
    return out.index_add_(0, seg, src)
def _pad(x, pw):
    flat = tuple(v for pair in reversed(pw) for v in pair)
    return torch.nn.functional.pad(x, flat)

kernel_name = 'parallel_sum__sliding_block__dense_activation_gelu__prompt'

def setup_inputs():

    _w = (lambda a: (lambda t: t.to(torch.bfloat16) if t.is_floating_point() else t)(torch.as_tensor(a)))
    def _A_setup():
        B, S, D = 1, 2048, 1024
        return {
            "x": _w((lambda *s: torch.randn(*s, dtype=torch.bfloat16) * 0.05)(B, S, D)),
            "wqkv": _w((lambda *s: torch.randn(*s, dtype=torch.bfloat16) * 0.05)(D, 3 * D)),
            "wo": _w((lambda *s: torch.randn(*s, dtype=torch.bfloat16) * 0.05)(D, D)),
        }
    _A_in = _A_setup()

    def _B_setup():
        B, S, D, F = 1, 2048, 1024, 3584
        return {
            "x": _w((lambda *s: torch.randn(*s, dtype=torch.bfloat16) * 0.05)(B, S, D)),
            "w1": _w((lambda *s: torch.randn(*s, dtype=torch.bfloat16) * 3.2)(D, F) * (D ** -0.5)),
            "b1": _w((lambda *s: torch.randn(*s, dtype=torch.bfloat16) * 3.2)(F) * 0.01),
            "w2": _w((lambda *s: torch.randn(*s, dtype=torch.bfloat16) * 0.4)(F, D) * (F ** -0.5)),
            "b2": _w((lambda *s: torch.randn(*s, dtype=torch.bfloat16) * 0.4)(D) * 0.01),
        }
    _B_in = _B_setup()

    return {
        "A_x": _A_in["x"],
        "A_wqkv": _A_in["wqkv"],
        "A_wo": _A_in["wo"],
        "B_x": _B_in["x"],
        "B_w1": _B_in["w1"],
        "B_b1": _B_in["b1"],
        "B_w2": _B_in["w2"],
        "B_b2": _B_in["b2"],
    }

def reference(A_x, A_wqkv, A_wo, B_x, B_w1, B_b1, B_w2, B_b2):
    def _A_ref(x, wqkv, wo):
        B, S, D = x.shape
        H = 32; Dh = D // H; W = 256
        qkv = (lambda x, *d: x.permute(*d))((x @ wqkv).reshape(B, S, 3, H, Dh), 2, 0, 3, 1, 4)
        q, k, v = qkv[0], qkv[1], qkv[2]
        scores = torch.einsum("bhqd,bhkd->bhqk", q, k) * (Dh ** -0.5)
        idx = torch.arange(S)
        mask = (idx[:, None] - idx[None, :] >= 0) & (idx[:, None] - idx[None, :] < W)
        scores = torch.where(mask[None, None], scores, -1e9)
        p = _softmax(scores, axis=-1)
        o = torch.einsum("bhqk,bhkd->bhqd", p, v)
        return (lambda x, *d: x.permute(*d))(o, 0, 2, 1, 3).reshape(B, S, D) @ wo

    def _B_ref(x, w1, b1, w2, b2):
        h = torch.einsum("bsd,df->bsf", x, w1) + b1
        h = _gelu(h)
        return torch.einsum("bsf,fd->bsd", h, w2) + b2

    x = A_x
    xn = _layernorm(x, axis=-1)
    return x + _A_ref(xn, A_wqkv, A_wo) + _B_ref(xn, B_w1, B_b1, B_w2, B_b2)
```

```python
class Asm:
    def __init__(self):
        self.lines = []
    def __call__(self, s):
        self.lines.append("    " + s)
    def label(self, l):
        self.lines.append(l + ":")
    def c(self, s):
        self.lines.append("    ; " + s)
    def raw(self, s):
        self.lines.append(s)
    def text(self):
        return "\n".join(self.lines) + "\n"

def vr(b, n=1):
    return f"v{b}" if n == 1 else f"v[{b}:{b+n-1}]"
def ar(b, n=1):
    return f"a{b}" if n == 1 else f"a[{b}:{b+n-1}]"
def sr(b, n=1):
    return f"s{b}" if n == 1 else f"s[{b}:{b+n-1}]"

def kernel_begin(A, name):
    A.raw(f".globl {name}")
    A.raw(".p2align 8")
    A.raw(f".type {name},@function")
    A.label(name)

def kernel_desc(name, vgpr, sgpr, accum):
    return f""".p2align 6
.amdhsa_kernel {name}
  .amdhsa_next_free_vgpr {vgpr}
  .amdhsa_next_free_sgpr {sgpr}
  .amdhsa_accum_offset {accum}
  .amdhsa_group_segment_fixed_size 0
  .amdhsa_kernarg_size 88
  .amdhsa_user_sgpr_count 2
  .amdhsa_user_sgpr_kernarg_segment_ptr 1
  .amdhsa_system_sgpr_workgroup_id_x 1
.end_amdhsa_kernel
"""

def make_srd(A, d, base_lo, base_hi, nbytes):
    if base_lo != f"s{d}":
        A(f"s_mov_b32 s{d}, {base_lo}")
    A(f"s_and_b32 s{d+1}, {base_hi}, 0xffff")
    A(f"s_mov_b32 s{d+2}, {nbytes if isinstance(nbytes,str) else hex(nbytes)}")
    A(f"s_mov_b32 s{d+3}, 0x20000")

import struct
def f2u(f):
    return struct.unpack("<I", struct.pack("<f", f))[0]
def fhex(f):
    return hex(f2u(f))
```

```python
import sys, math
from asmlib import *

MB = 1 << 20
WS_XN = 0
WS_Q = 4 * MB
WS_K = 8 * MB
WS_V = 12 * MB
WS_AH = 16 * MB
AH_G = 144 * 2048
WS_PART = 40 * MB
WS_BYTES = 256 * MB
KA_X, KA_WQKV, KA_WO, KA_BX, KA_W1, KA_B1, KA_W2, KA_B2, KA_OUT, KA_DBG, KA_WS = [8 * i for i in range(11)]
NEG = -1.0e30

def gen_ln(A):
    name = "ln_kernel"
    kernel_begin(A, name)
    A("s_cmp_ge_u32 s2, 256")
    A("s_cbranch_scc1 L_ln_end")
    A(f"s_load_dwordx2 s[4:5], s[0:1], {KA_X}")
    A(f"s_load_dwordx2 s[6:7], s[0:1], {KA_WS}")
    A("v_lshrrev_b32 v1, 5, v0")
    A("v_and_b32 v2, 31, v0")
    A("v_lshlrev_b32 v3, 11, v1")
    A("v_lshl_add_u32 v3, v2, 4, v3")
    A("s_lshl_b32 s3, s2, 14")
    A("s_waitcnt lgkmcnt(0)")
    make_srd(A, 8, "s4", "s5", 4 * MB)
    for i in range(4):
        A(f"buffer_load_dwordx4 v[{8+4*i}:{11+4*i}], v3, s[8:11], s3 offen offset:{512*i}")
    make_srd(A, 12, "s6", "s7", 4 * MB)
    A("v_lshrrev_b32 v5, 2, v2")
    A("v_and_b32 v6, 1, v2")
    A("v_and_b32 v7, 3, v5")
    A("v_lshl_add_u32 v7, v7, 1, v6")
    A("v_xor_b32 v7, v7, v1")
    A("v_lshlrev_b32 v4, 9, v5")
    A("v_lshl_add_u32 v4, v6, 8, v4")
    A("v_lshl_add_u32 v4, v7, 4, v4")
    A("v_bfe_u32 v6, v2, 1, 1")
    A("v_lshl_add_u32 v4, v6, 3, v4")
    A("v_and_b32 v7, 3, v1")
    A("v_bfe_u32 v6, v0, 4, 1")
    A("v_lshl_add_u32 v7, v7, 1, v6")
    A("v_and_b32 v6, 7, v0")
    A("v_xor_b32 v7, v7, v6")
    A("v_lshlrev_b32 v5, 12, v1")
    A("v_bfe_u32 v6, v0, 3, 2")
    A("v_lshl_add_u32 v5, v6, 8, v5")
    A("v_lshl_add_u32 v5, v7, 4, v5")
    A("v_lshlrev_b32 v6, 4, v0")
    A("s_lshr_b32 s16, s2, 3")
    A("s_lshl_b32 s16, s16, 17")
    A("s_bfe_u32 s17, s2, 0x20001")
    A("s_lshl_b32 s17, s17, 10")
    A("s_add_u32 s16, s16, s17")
    A("s_and_b32 s17, s2, 1")
    A("s_lshl_b32 s17, s17, 7")
    A("s_add_u32 s16, s16, s17")
    F = 24
    for i in range(4):
        A(f"s_waitcnt vmcnt({3-i})")
        for d in range(4):
            s = 8 + 4 * i + d
            A(f"v_lshlrev_b32 v{F+2*(4*i+d)}, 16, v{s}")
            A(f"v_and_b32 v{F+2*(4*i+d)+1}, 0xffff0000, v{s}")
    A(f"v_pk_add_f32 v[56:57], v[{F}:{F+1}], v[{F+2}:{F+3}]")
    A(f"v_pk_add_f32 v[58:59], v[{F+4}:{F+5}], v[{F+6}:{F+7}]")
    for p in range(4, 16, 2):
        A(f"v_pk_add_f32 v[56:57], v[56:57], v[{F+2*p}:{F+2*p+1}]")
        A(f"v_pk_add_f32 v[58:59], v[58:59], v[{F+2*p+2}:{F+2*p+3}]")
    A("v_pk_add_f32 v[56:57], v[56:57], v[58:59]")
    A("v_add_f32 v56, v56, v57")
    def red32(r, t):
        for sh in (8, 4, 2, 1):
            A("s_nop 1")
            A(f"v_add_f32_dpp v{r}, v{r}, v{r} row_ror:{sh} row_mask:0xf bank_mask:0xf")
        A(f"v_mov_b32 v{t}, v{r}")
        A("s_nop 1")
        A(f"v_permlane16_swap_b32 v{r}, v{t}")
        A("s_nop 1")
        A(f"v_add_f32 v{r}, v{r}, v{t}")
    red32(56, 57)
    A(f"v_mul_f32 v56, {fhex(1.0/1024)}, v56")
    for p in range(16):
        A(f"v_pk_add_f32 v[{F+2*p}:{F+2*p+1}], v[{F+2*p}:{F+2*p+1}], v[56:57] op_sel_hi:[1,0] neg_lo:[0,1] neg_hi:[0,1]")
    A(f"v_pk_mul_f32 v[58:59], v[{F}:{F+1}], v[{F}:{F+1}]")
    A(f"v_pk_mul_f32 v[60:61], v[{F+2}:{F+3}], v[{F+2}:{F+3}]")
    for p in range(2, 16, 2):
        A(f"v_pk_fma_f32 v[58:59], v[{F+2*p}:{F+2*p+1}], v[{F+2*p}:{F+2*p+1}], v[58:59]")
        A(f"v_pk_fma_f32 v[60:61], v[{F+2*p+2}:{F+2*p+3}], v[{F+2*p+2}:{F+2*p+3}], v[60:61]")
    A("v_pk_add_f32 v[58:59], v[58:59], v[60:61]")
    A("v_add_f32 v58, v58, v59")
    red32(58, 59)
    A(f"v_mov_b32 v59, {fhex(1e-5)}")
    A(f"v_fmac_f32 v59, {fhex(1.0/1024)}, v58")
    A("v_rsq_f32 v58, v59")
    A("s_nop 0")
    for p in range(16):
        A(f"v_pk_mul_f32 v[{F+2*p}:{F+2*p+1}], v[{F+2*p}:{F+2*p+1}], v[58:59] op_sel_hi:[1,0]")
    for p in range(16):
        A(f"v_cvt_pk_bf16_f32 v{8+p}, v{F+2*p}, v{F+2*p+1}")
    for i in range(4):
        A(f"ds_write_b64 v4, v[{8+4*i}:{9+4*i}] offset:{4096*i}")
        A(f"ds_write_b64 v4, v[{10+4*i}:{11+4*i}] offset:{4096*i+128}")
    A("s_waitcnt lgkmcnt(0)")
    A("s_barrier")
    for i in range(4):
        A(f"ds_read_b128 v[{24+4*i}:{27+4*i}], v6 offset:{4096*i}")
    for i in range(4):
        A(f"s_waitcnt lgkmcnt({3-i})")
        A(f"buffer_store_dwordx4 v[{24+4*i}:{27+4*i}], v5, s[12:15], s16 offen")
        if i < 3:
            A("s_add_u32 s16, s16, 32768")
    A.label("L_ln_end")
    A("s_endpgm")
    return name, kernel_desc(name, 64, 32, 64), (256, 256, 16384)

def mainloop(A, P):
    MS, NT, U, RA, distA, BKS, S, DW, RB = (P[k] for k in ("MS", "NT", "U", "RA", "distA", "BKS", "S", "DW", "RB"))
    nsteps = P["nsteps"]
    assert U % RA == 0 and U % (BKS * S) == 0 and nsteps % U == 0 and U % RB == 0
    assert distA <= RA - 1 and DW <= S - 1 and BKS >= RB
    L = P["label"]
    isvm = lambda s: s.startswith("buffer_")
    log = []
    def emit_list(lst, tag):
        for s in lst:
            A(s)
            if isvm(s):
                log.append(tag)
    def need_count(tags):
        last = -1
        for i, t in enumerate(log):
            if t in tags:
                last = i
        assert last >= 0, tags
        return len(log) - 1 - last
    def stage_of_interval(q):
        return q + DW - 1
    def plan_step(i):
        chunks = []
        al = P["aload"]((i + distA) % RA)
        chunks.append((al, ("A", i + distA)))
        q = (i + RB) // BKS
        sub = (i + RB) % BKS
        sg = stage_of_interval(q)
        dl = P["dma"](sg % S)
        idx = [k for k, s in enumerate(dl) if isvm(s)]
        per = len(idx) // BKS
        assert per * BKS == len(idx)
        lo = 0 if sub == 0 else idx[sub * per - 1] + 1
        hi = len(dl) if sub == BKS - 1 else idx[(sub + 1) * per - 1] + 1
        chunks.append((dl[lo:hi], ("W", sg)))
        return chunks
    first_step = -max(distA, DW * BKS + RB)
    for i in range(first_step, 0):
        for lst, tag in plan_step(i):
            if tag[1] >= 0:
                emit_list(lst, tag)
    if "pro_mid" in P:
        P["pro_mid"](len(log))
    for i in range(-RB, 0):
        if (i + RB) % BKS == 0:
            A(f"s_waitcnt vmcnt({min(63, need_count({('W', (i + RB) // BKS)}))})")
            A("s_barrier")
        t = i + RB
        for j in range(NT):
            for s in P["dsread"]((t // BKS) % S, t % BKS, j, t % RB):
                A(s)
    A(f"s_mov_b32 {P['scnt']}, {nsteps // U}")
    A("s_waitcnt lgkmcnt(0)")
    A(".p2align 6")
    A.label(L + "_loop")
    waits = []
    for rep in range(2):
        Asave = A.lines
        if rep == 1:
            A.lines = []
        w = []
        for ii in range(U):
            i = rep * U + ii
            tags = {("A", i)}
            bar = (i + RB) % BKS == 0
            if bar:
                tags.add(("W", (i + RB) // BKS))
            n = min(need_count({t}) for t in tags)
            w.append(n)
            A(f"s_waitcnt vmcnt({min(63, n)})")
            if bar:
                A("s_barrier")
            fill = []
            for lst, tag in plan_step(i):
                cur = []
                for s in lst:
                    cur.append(s)
                    if isvm(s):
                        fill.append((cur, tag)); cur = []
                if cur:
                    fill.append((cur, tag))
            nm = NT * MS
            cand = [k for k in range(nm) if (k % MS) != MS - 1 or MS == 1]
            pos = {}
            for f in range(len(fill)):
                k = cand[(f * len(cand)) // len(fill)]
                pos.setdefault(k, []).append(fill[f])
            t = i + RB
            lg_every = P.get("lg_every", 4)
            for j in range(NT):
                if j % lg_every == 0:
                    jl = min(NT - 1, j + lg_every - 1)
                    newer = (RB * NT - 1) - (jl - j)
                    A(f"s_waitcnt lgkmcnt({min(15, 2 * newer)})")
                for m in range(MS):
                    k = j * MS + m
                    a, b = ar(P["bfrag"](i % RB, j), 4), ar(P["afrag"](i % RA, m), 4)
                    if P["swap"](j):
                        a, b = b, a
                    if not P.get("no_mfma"):
                        A(f"v_mfma_f32_16x16x32_bf16 {P['acc'](j, m)}, {a}, {b}, {P['acc'](j, m)}")
                    for lst, tag in pos.get(k, []):
                        emit_list(lst, tag)
                if not P.get("no_ds"):
                    for s in P["dsread"]((t // BKS) % S, t % BKS, j, t % RB):
                        A(s)
        waits.append(w)
        if rep == 1:
            A.lines = Asave
        else:
            A(f"s_sub_u32 {P['scnt']}, {P['scnt']}, 1")
            A(f"s_cmp_lg_u32 {P['scnt']}, 0")
            A(f"s_cbranch_scc1 {L}_loop")
    assert waits[0] == waits[1], waits

def gen_gemm1(A, cfg):
    name = "gemm1_kernel"
    kernel_begin(A, name)
    U, RA, distA, S, DW = cfg["U"], cfg["RA"], cfg["distA"], cfg["S"], cfg["DW"]
    STG = 16384
    ACC0 = 48
    acc = lambda j, m: vr(ACC0 + (j * 4 + m) * 4, 4)
    accb = lambda j, m: ACC0 + (j * 4 + m) * 4
    BF0 = 16 * RA
    A("s_cmp_ge_u32 s2, 256")
    A("s_cbranch_scc1 L_g1_end")
    A(f"s_load_dwordx2 s[16:17], s[0:1], {KA_WQKV}")
    A(f"s_load_dwordx2 s[18:19], s[0:1], {KA_W1}")
    A(f"s_load_dwordx2 s[20:21], s[0:1], {KA_B1}")
    A(f"s_load_dwordx2 s[22:23], s[0:1], {KA_WS}")
    A("v_lshrrev_b32 v1, 6, v0")
    A("v_and_b32 v0, 63, v0")
    A("s_nop 0")
    A("v_readfirstlane_b32 s24, v1")
    A("s_and_b32 s25, s2, 1")
    A("s_lshl_b32 s25, s25, 2")
    A("s_bfe_u32 s26, s2, 0x20003")
    A("s_add_u32 s25, s25, s26")
    A("s_bfe_u32 s26, s2, 0x20001")
    A("s_lshl_b32 s26, s26, 3")
    A("s_lshr_b32 s27, s2, 5")
    A("s_add_u32 s26, s26, s27")
    A("s_and_b32 s27, s26, 1")
    A("v_lshlrev_b32 v1, 4, v0")
    A("v_lshrrev_b32 v2, 2, v0")
    A("v_and_b32 v3, 3, v0")
    A("v_lshlrev_b32 v3, 3, v3")
    A("v_mul_u32_u24 v4, 192, v2")
    A("v_add_u32 v4, v4, v3")
    A("v_bfe_u32 v5, v0, 4, 1")
    A("v_lshl_add_u32 v6, v5, 5, v4")
    A("v_xor_b32 v5, 1, v5")
    A("v_lshl_add_u32 v7, v5, 5, v4")
    A("v_mul_u32_u24 v8, 224, v2")
    A("v_add_u32 v8, v8, v3")
    A("v_add_u32 v8, 8192, v8")
    if S * STG > 65536:
        A("v_add_u32 v9, 0x10000, v6")
        A("v_add_u32 v10, 0x10000, v7")
        A("v_add_u32 v11, 0x10000, v8")
    A("s_waitcnt lgkmcnt(0)")
    A("s_lshl_b32 s28, s25, 2")
    A("s_add_u32 s28, s28, s24")
    A("s_lshl_b32 s28, s28, 17")
    A("s_add_u32 s4, s22, s28")
    A("s_addc_u32 s5, s23, 0")
    make_srd(A, 4, "s4", "s5", 131072)
    make_srd(A, 28, "s20", "s21", 7168)
    A("v_lshrrev_b32 v2, 4, v0")
    A("v_lshlrev_b32 v2, 3, v2")
    A("s_mul_i32 s32, s26, 224")
    A("s_lshl_b32 s33, s27, 5")
    A("s_add_u32 s33, s33, s32")
    A("s_cmp_eq_u32 s27, 0")
    A("s_cselect_b32 s34, 192, 0")
    A("s_add_u32 s34, s34, s32")
    for b in range(6):
        A(f"buffer_load_dwordx2 v[{16+2*b}:{17+2*b}], v2, s[28:31], s33 offen offset:{32*b}")
    A(f"buffer_load_dwordx2 v[28:29], v2, s[28:31], s34 offen")
    A("s_cmp_ge_u32 s24, 2")
    A("s_cbranch_scc1 L_g1_w1setup")
    make_srd(A, 8, "s16", "s17", 1024 * 6144)
    A(f"s_mov_b32 s14, {32*6144}")
    A(f"s_mul_i32 s13, s24, {16*6144}")
    A("s_lshl_b32 s35, s26, 6")
    A("s_add_u32 s13, s13, s35")
    for p in range(3):
        A(f"v_add_u32 v30, {64*p}, v0")
        A("v_mul_u32_u24 v31, 43691, v30")
        A("v_lshrrev_b32 v31, 19, v31")
        A("v_mul_u32_u24 v32, 12, v31")
        A("v_sub_u32 v32, v30, v32")
        A("v_lshrrev_b32 v33, 2, v32")
        A("v_and_b32 v32, 3, v32")
        A("v_bfe_u32 v34, v31, 2, 1")
        A("v_lshlrev_b32 v34, 1, v34")
        A("v_xor_b32 v32, v32, v34")
        A("v_mul_u32_u24 v31, 6144, v31")
        A("v_lshl_add_u32 v31, v33, 11, v31")
        A("v_lshl_add_u32 v31, v32, 4, v31")
        A(f"v_subrev_u32 v{12+p}, {1024*p}, v31")
    A("v_mov_b32 v15, 0x7f000000")
    A("s_branch L_g1_setupdone")
    A.label("L_g1_w1setup")
    make_srd(A, 8, "s18", "s19", 1024 * 7168)
    A(f"s_mov_b32 s14, {32*7168}")
    A("s_mov_b32 s13, s32")
    A("s_sub_u32 s35, s24, 2")
    A("s_lshl_b32 s35, s35, 8")
    for p in range(4):
        A(f"v_add_u32 v30, {64*p}, v0")
        A("v_add_u32 v30, s35, v30")
        A("v_mul_u32_u24 v31, 4682, v30")
        A("v_lshrrev_b32 v31, 16, v31")
        A("v_mul_u32_u24 v32, 14, v31")
        A("v_sub_u32 v32, v30, v32")
        A("v_lshl_add_u32 v32, s27, 1, v32")
        A("v_subrev_u32 v33, 14, v32")
        A("v_cmp_le_u32 vcc, 14, v32")
        A("s_nop 1")
        A("v_cndmask_b32 v32, v32, v33, vcc")
        A("v_mul_u32_u24 v33, 7168, v31")
        A("v_lshl_add_u32 v33, v32, 4, v33")
        A(f"v_subrev_u32 v33, {1024*p}, v33")
        A("v_mov_b32 v34, 0x7f000000")
        A("v_cmp_le_u32 vcc, 32, v31")
        A("s_nop 1")
        A(f"v_cndmask_b32 v{12+p}, v33, v34, vcc")
    A.label("L_g1_setupdone")
    A("s_lshl_b32 s15, s24, 12")
    A("s_mov_b32 s12, 0")

    def aload(slot):
        l = [f"buffer_load_dwordx4 {ar(slot*16+4*m,4)}, v1, s[4:7], s12 offen offset:{1024*m}" for m in range(4)]
        l.append("s_add_u32 s12, s12, 4096")
        return l
    def dma(slot):
        l = [f"s_add_u32 m0, s15, {slot*STG}", "s_nop 0"]
        l += [f"buffer_load_dwordx4 v{12+p}, s[8:11], s13 offen offset:{1024*p} lds" for p in range(4)]
        l.append("s_add_u32 s13, s13, s14")
        return l
    def dsread(slot, ks, j, par):
        off = slot * STG
        hi = off >= 65536
        off &= 65535
        b = BF0 + 4 * j
        if j < 6:
            base = (9 if hi else 6) + (j & 1)
            o = off + (j >> 1) * 64
            return [f"ds_read_b64_tr_b16 {ar(b,2)}, v{base} offset:{o}",
                    f"ds_read_b64_tr_b16 {ar(b+2,2)}, v{base} offset:{o+4096}"]
        base = 11 if hi else 8
        o = off + (j - 6) * 32
        return [f"ds_read_b64_tr_b16 {ar(b,2)}, v{base} offset:{o}",
                f"ds_read_b64_tr_b16 {ar(b+2,2)}, v{base} offset:{o+3584}"]
    def pro_mid(nlog):
        for j in range(6):
            for m in range(4):
                for r in range(4):
                    A(f"v_mov_b32 v{accb(j,m)+r}, 0")
        A(f"s_waitcnt vmcnt({min(63,nlog)})")
        for b in range(7):
            d = accb(6 + b, 0)
            A(f"v_lshlrev_b32 v{d}, 16, v{16+2*b}")
            A(f"v_and_b32 v{d+1}, 0xffff0000, v{16+2*b}")
            A(f"v_lshlrev_b32 v{d+2}, 16, v{17+2*b}")
            A(f"v_and_b32 v{d+3}, 0xffff0000, v{17+2*b}")
            for m in range(1, 4):
                for r in range(4):
                    A(f"v_mov_b32 v{accb(6+b,m)+r}, v{d+r}")
    P = dict(MS=4, NT=13, U=U, nsteps=32, RA=RA, distA=distA, BKS=1, S=S, DW=DW, RB=1, acc=acc,
             afrag=lambda slot, m: slot * 16 + 4 * m, bfrag=lambda par, j: BF0 + 4 * j,
             swap=lambda j: j in (4, 5), aload=aload, dma=dma, dsread=dsread, label="L_g1", scnt="s36",
             pro_mid=pro_mid, lg_every=cfg.get("lg_every", 5), no_mfma=cfg.get("no_mfma"), no_ds=cfg.get("no_ds"))
    mainloop(A, P)
    make_srd(A, 28, "s22", "s23", WS_BYTES)
    A("s_lshl_b32 s32, s26, 17")
    A("s_lshl_b32 s33, s25, 14")
    A("s_add_u32 s32, s32, s33")
    A("s_lshl_b32 s33, s24, 12")
    A("s_add_u32 s32, s32, s33")
    A(f"s_add_u32 s33, s32, {WS_K}")
    A(f"s_add_u32 s34, s32, {WS_V}")
    A(f"s_add_u32 s32, s32, {WS_Q}")
    qs = (32 ** -0.5) * math.log2(math.e)
    A(f"v_mov_b32 v2, {fhex(qs)}")
    A("s_nop 7")
    T = 16
    nq = [0]
    def tq():
        b = T + 4 * (nq[0] % 8); nq[0] += 1
        return b
    for m in range(4):
        t = tq()
        for h in range(2):
            a = accb(2 + h, m)
            A(f"v_cvt_pk_bf16_f32 v{t+2*h}, v{a}, v{a+1}")
            A(f"v_cvt_pk_bf16_f32 v{t+2*h+1}, v{a+2}, v{a+3}")
        A(f"buffer_store_dwordx4 {vr(t,4)}, v1, s[28:31], s33 offen offset:{1024*m}")
    for p in range(2):
        for tt in range(2):
            t = tq()
            for h in range(2):
                a = accb(4 + tt, 2 * p + h)
                A(f"v_cvt_pk_bf16_f32 v{t+2*h}, v{a}, v{a+1}")
                A(f"v_cvt_pk_bf16_f32 v{t+2*h+1}, v{a+2}, v{a+3}")
            A(f"buffer_store_dwordx4 {vr(t,4)}, v1, s[28:31], s34 offen offset:{2048*p+1024*tt}")
    for m in range(4):
        t = tq()
        for h in range(2):
            a = accb(h, m)
            A(f"v_pk_mul_f32 {vr(a,2)}, {vr(a,2)}, v[2:3] op_sel_hi:[1,0]")
            A(f"v_pk_mul_f32 {vr(a+2,2)}, {vr(a+2,2)}, v[2:3] op_sel_hi:[1,0]")
            A(f"v_cvt_pk_bf16_f32 v{t+2*h}, v{a}, v{a+1}")
            A(f"v_cvt_pk_bf16_f32 v{t+2*h+1}, v{a+2}, v{a+3}")
        A(f"buffer_store_dwordx4 {vr(t,4)}, v1, s[28:31], s32 offen offset:{1024*m}")
    A("s_lshl_b32 s32, s25, 3")
    A("s_lshl_b32 s33, s24, 1")
    A("s_add_u32 s32, s32, s33")
    A(f"s_mul_i32 s32, s32, {AH_G}")
    A(f"s_add_u32 s32, s32, {WS_AH}")
    A("s_mul_i32 s33, s26, 7")
    A("s_add_u32 s33, s33, s27")
    A("s_lshr_b32 s33, s33, 1")
    A("s_lshl_b32 s33, s33, 11")
    A("s_add_u32 s32, s32, s33")
    A("s_mul_i32 s33, s27, 8184")
    A("s_sub_u32 s33, s32, s33")
    A("s_add_u32 s33, s33, 6144")
    c1 = -2.0 * math.sqrt(2.0 / math.pi) * math.log2(math.e)
    c2 = c1 * 0.044715
    A(f"v_mov_b32 v2, {fhex(c1)}")
    A(f"v_mov_b32 v4, {fhex(c2)}")
    def gelu_quad(a, e):
        for h in (0, 2):
            A(f"v_pk_mul_f32 {vr(e+h,2)}, {vr(a+h,2)}, {vr(a+h,2)}")
        for h in (0, 2):
            A(f"v_pk_fma_f32 {vr(e+h,2)}, {vr(e+h,2)}, v[4:5], v[2:3] op_sel_hi:[1,0,0]")
        for h in (0, 2):
            A(f"v_pk_mul_f32 {vr(e+h,2)}, {vr(e+h,2)}, {vr(a+h,2)}")
        for r in range(4):
            A(f"v_exp_f32 v{e+r}, v{e+r}")
        for h in (0, 2):
            A(f"v_pk_add_f32 {vr(e+h,2)}, {vr(e+h,2)}, 1.0 op_sel_hi:[1,0]")
        for r in range(4):
            A(f"v_rcp_f32 v{e+r}, v{e+r}")
        for h in (0, 2):
            A(f"v_pk_mul_f32 {vr(a+h,2)}, {vr(a+h,2)}, {vr(e+h,2)}")
    for m in range(4):
        A(f"s_add_u32 s34, s32, {(m>>1)*AH_G}")
        A(f"s_add_u32 s35, s34, 4096")
        A(f"s_add_u32 s37, s33, {(m>>1)*AH_G}")
        for i in range(3):
            t = tq()
            for h in range(2):
                a = accb(6 + 2 * i + h, m)
                gelu_quad(a, 8 + 4 * h)
                A(f"v_cvt_pk_bf16_f32 v{t+2*h}, v{a}, v{a+1}")
                A(f"v_cvt_pk_bf16_f32 v{t+2*h+1}, v{a+2}, v{a+3}")
            so, off = ("s34", i * 2048 + (m & 1) * 1024) if i < 2 else ("s35", (m & 1) * 1024)
            A(f"buffer_store_dwordx4 {vr(t,4)}, v1, s[28:31], {so} offen offset:{off}")
        t = tq()
        a = accb(12, m)
        gelu_quad(a, 8)
        A(f"v_cvt_pk_bf16_f32 v{t}, v{a}, v{a+1}")
        A(f"v_cvt_pk_bf16_f32 v{t+1}, v{a+2}, v{a+3}")
        A(f"buffer_store_dwordx2 {vr(t,2)}, v1, s[28:31], s37 offen offset:{(m&1)*1024}")
    A.label("L_g1_end")
    A("s_endpgm")
    nacc = BF0 + 52
    return name, kernel_desc(name, 256 + nacc, 48, 256), (256, 256, S * STG)

def gen_attn(A):
    name = "attn_kernel"
    kernel_begin(A, name)
    A("s_cmp_ge_u32 s2, 256")
    A("s_cbranch_scc1 L_at_end")
    A(f"s_load_dwordx2 s[22:23], s[0:1], {KA_WS}")
    A("v_lshrrev_b32 v1, 6, v0")
    A("v_and_b32 v0, 63, v0")
    A("s_nop 0")
    A("v_readfirstlane_b32 s24, v1")
    A("s_and_b32 s25, s2, 7")
    A("s_lshr_b32 s26, s2, 3")
    A("v_lshlrev_b32 v1, 4, v0")
    A("s_waitcnt lgkmcnt(0)")
    A("s_lshl_b32 s27, s26, 17")
    for d, off in ((4, WS_K), (8, WS_V), (12, WS_Q)):
        A(f"s_add_u32 s{d}, s22, s27")
        A(f"s_addc_u32 s{d+1}, s23, 0")
        A(f"s_add_u32 s{d}, s{d}, {off}")
        A(f"s_addc_u32 s{d+1}, s{d+1}, 0")
        make_srd(A, d, f"s{d}", f"s{d+1}", 131072)
    A("s_lshl_b32 s28, s25, 14")
    A("s_lshl_b32 s29, s24, 12")
    A("s_add_u32 s28, s28, s29")
    A("s_sub_u32 s28, s28, 16384")
    A("s_cmp_lt_i32 s28, 0")
    A("s_cselect_b32 s28, 0x40000000, s28")
    A("s_mov_b32 m0, s29")
    A("s_nop 0")
    for p in range(4):
        A(f"buffer_load_dwordx4 v1, s[4:7], s28 offen offset:{1024*p} lds")
    A("s_lshl_b32 s30, s25, 14")
    A("s_lshl_b32 s31, s24, 11")
    A("s_add_u32 s30, s30, s31")
    Q = 8
    for s in range(2):
        A(f"buffer_load_dwordx4 {vr(Q+4*s,4)}, v1, s[12:15], s30 offen offset:{1024*s}")
    A("s_add_u32 m0, s29, 32768")
    A("s_nop 0")
    for p in range(4):
        A(f"buffer_load_dwordx4 v1, s[8:11], s28 offen offset:{1024*p} lds")
    MU, MC = 16, 20
    A("v_and_b32 v2, 15, v0")
    A("v_lshrrev_b32 v3, 4, v0")
    A("v_lshlrev_b32 v3, 2, v3")
    A(f"v_mov_b32 v4, {fhex(NEG)}")
    for r in range(4):
        A(f"v_add_u32 v5, {r}, v3")
        A("v_cmp_lt_u32 vcc, v2, v5")
        A("s_nop 1")
        A(f"v_cndmask_b32 v{MU+r}, v4, 0, vcc" if False else f"v_cndmask_b32_e64 v{MU+r}, v4, 0, vcc")
        A(f"v_cndmask_b32_e64 v{MC+r}, 0, v4, vcc")
    ONES = 24
    for r in range(4):
        A(f"v_mov_b32 v{ONES+r}, 0x3f803f80")
    A("s_sub_u32 s32, 8, s24")
    A("s_cmp_eq_u32 s25, 0")
    A("s_cselect_b32 s32, s32, 0")
    A("v_add_u32 v2, s31, v1")
    CQ = 28
    KR = 40
    OA = 64
    LA = 80
    S0 = 88
    Sreg = lambda kt, s: S0 + (kt * 2 + s) * 4
    for r in range(24):
        A(f"v_mov_b32 v{OA+r}, 0")
    A("s_waitcnt vmcnt(4)")
    A("s_barrier")
    NR = 6
    def kread(kt):
        A(f"ds_read_b128 {vr(KR+4*(kt%NR),4)}, v2 offset:{1024*kt}")
    for kt in range(NR - 1):
        kread(kt)
    for kp in range(9):
        cq = CQ + 4 * (kp & 1)
        if kp < 8:
            A(f"s_cmp_gt_i32 s32, {kp}")
            A(f"s_cselect_b32 s33, {fhex(NEG)}, 0")
            for r in range(4):
                A(f"v_mov_b32 v{cq+r}, s33")
            if kp == 0:
                for r in range(4):
                    A(f"v_min_f32 v{36+r}, s33, v{MU+r}")
        for h in range(2):
            kt = 2 * kp + h
            if kt + NR - 1 < 18:
                kread(kt + NR - 1)
            outstanding = min(17, kt + NR - 1) - kt
            A(f"s_waitcnt lgkmcnt({outstanding})")
            if h == 0:
                A("s_nop 0")
            for s in range(2):
                d = kt - s
                if d < 0 or d > 16:
                    continue
                if d == 0:
                    c = vr(36, 4)
                elif d == 16:
                    c = vr(MC, 4)
                elif kp == 8:
                    c = "0"
                else:
                    c = vr(cq, 4)
                A(f"v_mfma_f32_16x16x32_bf16 {vr(Sreg(kt,s),4)}, {vr(KR+4*(kt%NR),4)}, {vr(Q+4*s,4)}, {c}")
    A("s_waitcnt vmcnt(0)")
    A("s_barrier")
    def vread(i):
        A(f"ds_read_b128 {vr(KR+4*(i%NR),4)}, v2 offset:{32768+1024*i}")
    A("s_nop 7")
    for i in range(NR):
        vread(i)
    MX = 4
    for s in range(2):
        regs = []
        for kt in range(18):
            if 0 <= kt - s <= 16:
                regs += [Sreg(kt, s) + r for r in range(4)]
        m = MX + 2 * s
        A(f"v_max3_f32 v{m}, v{regs[0]}, v{regs[1]}, v{regs[2]}")
        A(f"v_max3_f32 v{m+1}, v{regs[3]}, v{regs[4]}, v{regs[5]}")
        k = 6; alt = 0
        while k < len(regs):
            A(f"v_max3_f32 v{m+alt}, v{m+alt}, v{regs[k]}, v{regs[k+1]}")
            k += 2; alt ^= 1
        A(f"v_max_f32 v{m}, v{m}, v{m+1}")
    for sw in ("v_permlane32_swap_b32", "v_permlane16_swap_b32"):
        for s in range(2):
            A(f"v_mov_b32 v{MX+2*s+1}, v{MX+2*s}")
        A("s_nop 1")
        for s in range(2):
            A(f"{sw} v{MX+2*s}, v{MX+2*s+1}")
        A("s_nop 1")
        for s in range(2):
            A(f"v_max_f32 v{MX+2*s}, v{MX+2*s}, v{MX+2*s+1}")
    for kp in range(9):
        for s in range(2):
            dst = Sreg(2 * kp, s)
            for h in range(2):
                kt = 2 * kp + h
                a = Sreg(kt, s)
                if 0 <= kt - s <= 16:
                    for e in (0, 2):
                        A(f"v_pk_add_f32 {vr(a+e,2)}, {vr(a+e,2)}, {vr(MX+2*s,2)} op_sel_hi:[1,0] neg_lo:[0,1] neg_hi:[0,1]")
                    for r in range(4):
                        A(f"v_exp_f32 v{a+r}, v{a+r}")
            for h in range(2):
                kt = 2 * kp + h
                a = Sreg(kt, s)
                if 0 <= kt - s <= 16:
                    if h == 1 or kt - s == 16:
                        A("s_nop 0")
                    A(f"v_cvt_pk_bf16_f32 v{dst+2*h}, v{a}, v{a+1}")
                    A(f"v_cvt_pk_bf16_f32 v{dst+2*h+1}, v{a+2}, v{a+3}")
                else:
                    A(f"v_mov_b32 v{dst+2*h}, 0")
                    A(f"v_mov_b32 v{dst+2*h+1}, 0")
        issued = min(18, 2 * kp + NR)
        A(f"s_waitcnt lgkmcnt({issued - (2*kp+2)})")
        A("s_nop 0")
        for s in range(2):
            p = vr(Sreg(2 * kp, s), 4)
            for t in range(2):
                o = vr(OA + (t * 2 + s) * 4, 4)
                A(f"v_mfma_f32_16x16x32_bf16 {o}, {vr(KR+4*((2*kp+t)%NR),4)}, {p}, {o}")
            A(f"v_mfma_f32_16x16x32_bf16 {vr(LA+4*s,4)}, {vr(ONES,4)}, {p}, {vr(LA+4*s,4)}")
        for t in range(2):
            if 2 * kp + NR + t < 18:
                vread(2 * kp + NR + t)
    make_srd(A, 4, "s22", "s23", WS_BYTES)
    A("s_lshl_b32 s28, s25, 3")
    A("s_add_u32 s28, s28, s24")
    A(f"s_mul_i32 s28, s28, {AH_G}")
    A("s_lshl_b32 s29, s26, 11")
    A("s_add_u32 s28, s28, s29")
    A(f"s_add_u32 s28, s28, {WS_AH + 112*2048}")
    A("s_nop 3")
    for s in range(2):
        A(f"v_rcp_f32 v{MX+2*s}, v{LA+4*s}")
    A("s_nop 0")
    for s in range(2):
        for t in range(2):
            o = OA + (t * 2 + s) * 4
            for e in (0, 2):
                A(f"v_pk_mul_f32 {vr(o+e,2)}, {vr(o+e,2)}, {vr(MX+2*s,2)} op_sel_hi:[1,0]")
            A(f"v_cvt_pk_bf16_f32 v{8+4*s+2*t}, v{o}, v{o+1}")
            A(f"v_cvt_pk_bf16_f32 v{8+4*s+2*t+1}, v{o+2}, v{o+3}")
        A(f"buffer_store_dwordx4 {vr(8+4*s,4)}, v1, s[4:7], s28 offen offset:{1024*s}")
    A.label("L_at_end")
    A("s_endpgm")
    return name, kernel_desc(name, 232, 48, 232), (256, 512, 65536)

def gen_gemm2(A, cfg):
    name = "gemm2_kernel"
    kernel_begin(A, name)
    TN = 64
    NT = TN // 16
    CB = TN // 64
    U, RA, distA, S, DW, RB = cfg["U"], cfg["RA"], cfg["distA"], cfg["S"], cfg["DW"], cfg["RB"]
    BKS = 2
    GRP = CB * 2048
    STG = 4 * GRP
    ACC0 = 64
    accb = lambda j, m: ACC0 + (j * 2 + m) * 4
    acc = lambda j, m: vr(accb(j, m), 4)
    BF0 = 8 * RA
    A("s_cmp_ge_u32 s2, 256")
    A("s_cbranch_scc1 L_g2_end")
    A(f"s_load_dwordx2 s[16:17], s[0:1], {KA_W2}")
    A(f"s_load_dwordx2 s[18:19], s[0:1], {KA_WO}")
    A(f"s_load_dwordx2 s[20:21], s[0:1], {KA_B2}")
    A(f"s_load_dwordx2 s[22:23], s[0:1], {KA_WS}")
    A(f"s_load_dwordx2 s[40:41], s[0:1], {KA_X}")
    A(f"s_load_dwordx2 s[42:43], s[0:1], {KA_OUT}")
    A("v_lshrrev_b32 v1, 6, v0")
    A("v_and_b32 v0, 63, v0")
    A("s_nop 0")
    A("v_readfirstlane_b32 s24, v1")
    A("s_and_b32 s25, s2, 3")
    A("s_lshl_b32 s25, s25, 2")
    A("s_bfe_u32 s26, s2, 0x20003")
    A("s_add_u32 s25, s25, s26")
    A("s_bfe_u32 s26, s2, 0x10002")
    A("s_lshl_b32 s26, s26, 3")
    A("s_lshr_b32 s27, s2, 5")
    A("s_add_u32 s26, s26, s27")
    A("v_lshlrev_b32 v1, 4, v0")
    A("v_lshrrev_b32 v2, 2, v0")
    A("v_and_b32 v3, 3, v0")
    A("v_lshlrev_b32 v3, 3, v3")
    A("v_lshl_add_u32 v3, v2, 7, v3")
    A("v_bfe_u32 v2, v0, 3, 2")
    for t in range(4):
        A(f"v_xor_b32 v8, {t}, v2")
        A(f"v_lshl_add_u32 v{4+t}, v8, 5, v3")
    A("v_lshrrev_b32 v2, 3, v0")
    A("v_bfe_u32 v3, v0, 1, 2")
    A("v_bfe_u32 v12, v0, 4, 2")
    A("v_xor_b32 v3, v3, v12")
    A("v_lshlrev_b32 v2, 11, v2")
    A("v_lshl_add_u32 v2, v3, 5, v2")
    A("v_and_b32 v3, 1, v0")
    A("v_lshl_add_u32 v2, v3, 4, v2")
    for cb in range(CB):
        for h in range(2):
            p = cb * 2 + h
            A(f"v_add_u32 v{8+p}, {4096 + h*16384 + cb*128 - p*1024}, v2")
    A("s_waitcnt lgkmcnt(0)")
    A("s_lshl_b32 s28, s25, 2")
    A("s_add_u32 s28, s28, s24")
    A(f"s_mul_i32 s29, s28, {AH_G}")
    A(f"s_add_u32 s29, s29, {WS_AH}")
    A("s_add_u32 s4, s22, s29")
    A("s_addc_u32 s5, s23, 0")
    make_srd(A, 4, "s4", "s5", AH_G)
    A("s_sub_u32 s8, s16, 4096")
    A("s_subb_u32 s9, s17, 0")
    make_srd(A, 8, "s8", "s9", 3584 * 2048 + 4096)
    A("s_sub_u32 s18, s18, 4096")
    A("s_subb_u32 s19, s19, 0")
    A("s_and_b32 s19, s19, 0xffff")
    A(f"s_mul_i32 s13, s24, {16*2048}")
    A(f"s_mul_i32 s30, s26, {TN*2}")
    A("s_add_u32 s13, s13, s30")
    A("s_mov_b32 s14, s13")
    A(f"s_add_u32 s38, s13, {3584*2048}")
    A(f"s_mul_i32 s15, s24, {GRP}")
    A("s_mov_b32 s12, 0")
    make_srd(A, 44, "s40", "s41", 4 * MB)
    make_srd(A, 48, "s20", "s21", 2048)
    A("v_and_b32 v2, 15, v0")
    A("v_lshlrev_b32 v2, 11, v2")
    A("v_lshrrev_b32 v3, 4, v0")
    A("v_lshlrev_b32 v3, 3, v3")
    A("v_add_u32 v2, v2, v3")
    A("s_lshl_b32 s31, s28, 16")
    A("s_add_u32 s31, s31, s30")
    A("s_add_u32 s32, s31, 32768")
    XB, BB = 16, 48
    for j in range(NT):
        A(f"buffer_load_dwordx2 {vr(BB+2*j,2)}, v3, s[48:51], s30 offen offset:{32*j}")
    for m in range(2):
        for j in range(NT):
            A(f"buffer_load_dwordx2 {vr(XB+(j*2+m)*2,2)}, v2, s[44:47], {'s31' if m==0 else 's32'} offen offset:{32*j}")
    cnt = [0]
    def aload(slot):
        l = [f"buffer_load_dwordx4 {ar(slot*8+4*m,4)}, v1, s[4:7], s12 offen offset:{1024*m}" for m in range(2)]
        l.append("s_add_u32 s12, s12, 2048")
        return l
    def dma(slot):
        l = [f"s_add_u32 m0, s15, {slot*STG}",
             "s_cmp_eq_u32 s13, s38",
             "s_cselect_b32 s8, s18, s8",
             "s_cselect_b32 s9, s19, s9",
             f"s_cselect_b32 s10, {1024*2048+4096}, s10",
             "s_cselect_b32 s13, s14, s13",
             "s_cselect_b32 s38, -1, s38"]
        l += [f"buffer_load_dwordx4 v{8+p}, s[8:11], s13 offen offset:{1024*p} lds" for p in range(2 * CB)]
        l.append(f"s_add_u32 s13, s13, {64*2048}")
        return l
    def dsread(slot, ks, j, par):
        b = BF0 + (par * NT + j) * 4
        o = slot * STG + (2 * ks) * GRP + (j >> 2) * 2048
        assert o + GRP < 65536
        return [f"ds_read_b64_tr_b16 {ar(b,2)}, v{4+(j&3)} offset:{o}",
                f"ds_read_b64_tr_b16 {ar(b+2,2)}, v{4+(j&3)} offset:{o+GRP}"]
    def pro_mid(nlog):
        A(f"s_waitcnt vmcnt({min(63,nlog)})")
        for j in range(NT):
            A(f"v_lshlrev_b32 v12, 16, v{BB+2*j}")
            A(f"v_and_b32 v13, 0xffff0000, v{BB+2*j}")
            A(f"v_lshlrev_b32 v14, 16, v{BB+2*j+1}")
            A(f"v_and_b32 v15, 0xffff0000, v{BB+2*j+1}")
            for m in range(2):
                d = accb(j, m); x = XB + (j * 2 + m) * 2
                A(f"v_lshlrev_b32 v{d}, 16, v{x}")
                A(f"v_and_b32 v{d+1}, 0xffff0000, v{x}")
                A(f"v_lshlrev_b32 v{d+2}, 16, v{x+1}")
                A(f"v_and_b32 v{d+3}, 0xffff0000, v{x+1}")
                A(f"v_pk_add_f32 {vr(d,2)}, {vr(d,2)}, v[12:13]")
                A(f"v_pk_add_f32 {vr(d+2,2)}, {vr(d+2,2)}, v[14:15]")
    P = dict(MS=2, NT=NT, U=U, nsteps=144, RA=RA, distA=distA, BKS=BKS, S=S, DW=DW, RB=RB, acc=acc,
             afrag=lambda slot, m: slot * 8 + 4 * m, bfrag=lambda par, j: BF0 + (par * NT + j) * 4,
             swap=lambda j: False, aload=aload, dma=dma, dsread=dsread, label="L_g2", scnt="s36",
             pro_mid=pro_mid, lg_every=cfg.get("lg_every", 2), no_mfma=cfg.get("no_mfma"), no_ds=cfg.get("no_ds"))
    mainloop(A, P)
    make_srd(A, 44, "s42", "s43", 4 * MB)
    A("v_add_u32 v2, v2, v3")
    A("s_nop 7")
    for m in range(2):
        for pp in range(NT // 2):
            t = 16 + (m * (NT // 2) + pp) * 4
            a, b = accb(2 * pp, m), accb(2 * pp + 1, m)
            A(f"v_cvt_pk_bf16_f32 v{t}, v{a}, v{a+1}")
            A(f"v_cvt_pk_bf16_f32 v{t+1}, v{a+2}, v{a+3}")
            A(f"v_cvt_pk_bf16_f32 v{t+2}, v{b}, v{b+1}")
            A(f"v_cvt_pk_bf16_f32 v{t+3}, v{b+2}, v{b+3}")
            A("s_nop 1")
            A(f"v_permlane32_swap_b32 v{t}, v{t+2}")
            A(f"v_permlane32_swap_b32 v{t+1}, v{t+3}")
            A("s_nop 1")
            A(f"v_permlane16_swap_b32 v{t}, v{t+2}")
            A(f"v_permlane16_swap_b32 v{t+1}, v{t+3}")
            A("s_nop 1")
            A(f"buffer_store_dwordx4 {vr(t,4)}, v2, s[44:47], {'s31' if m==0 else 's32'} offen offset:{64*pp}")
    A.label("L_g2_end")
    A("s_endpgm")
    nacc = BF0 + RB * NT * 4
    return name, kernel_desc(name, 128 + nacc, 56, 128), (256, 256, S * STG)

HEADER = open("parallel_sum__sliding_block__dense_activation_gelu__prompt.s.ref").read().split("; Override")[0]

def build(cfg, only=None):
    A = Asm()
    ks = []
    ks.append(gen_ln(A))
    ks.append(gen_gemm1(A, cfg["g1"]))
    ks.append(gen_attn(A))
    ks.append(gen_gemm2(A, cfg["g2"]))
    out = HEADER
    for n, d, (g, b, l) in ks:
        if only is None or n in only:
            out += f"; @launch kernel={n} grid=({g},1,1) block=({b},1,1) lds={l}\n"
    out += '.amdgcn_target "amdgcn-amd-amdhsa--gfx950"\n.text\n'
    out += A.text()
    out += '.section .rodata,"a"\n'
    for n, d, _ in ks:
        out += d
    return out

DEFAULT = dict(
    g1=dict(U=8, RA=8, distA=4, S=8, DW=5),
    g2=dict(U=16, RA=16, distA=10, S=8, DW=6, RB=2),
)

if __name__ == "__main__":
    out = sys.argv[1] if len(sys.argv) > 1 else "parallel_sum__sliding_block__dense_activation_gelu__prompt.s"
    open(out, "w").write(build(DEFAULT))
    print("wrote", out)
```

```python
import sys, math
from asmlib import *

MB = 1 << 20
WS_XN = 0
WS_Q = 4 * MB
WS_K = 8 * MB
WS_V = 12 * MB
WS_AH = 16 * MB
AH_G = 144 * 2048
WS_PART = 40 * MB
WS_BYTES = 256 * MB
KA_X, KA_WQKV, KA_WO, KA_BX, KA_W1, KA_B1, KA_W2, KA_B2, KA_OUT, KA_DBG, KA_WS = [8 * i for i in range(11)]
NEG = -1.0e30

WS_STAMP = 200 * MB
STAMP = False
def stamp(A, i):
    if STAMP:
        A(f"s_memtime s[{64+4*i}:{65+4*i}]")
        A(f"s_memrealtime s[{66+4*i}:{67+4*i}]")
        A("s_waitcnt lgkmcnt(0)")
def stamp_out(A, n, kidx):
    if not STAMP:
        return
    A("s_waitcnt vmcnt(0)")
    stamp(A, n - 1)
    make_srd(A, 92, "s22", "s23", WS_BYTES)
    A("s_lshl_b32 s96, s2, 3")
    A("s_add_u32 s96, s96, s24")
    A("s_lshl_b32 s96, s96, 7")
    A(f"s_add_u32 s96, s96, {WS_STAMP + kidx * MB}")
    A("v_mov_b32 v0, 0")
    for i in range(2 * n):
        A(f"v_mov_b32 v1, s{64+2*i}")
        A(f"buffer_store_dword v1, v0, s[92:95], s96 offen offset:{4*i}")
    A("s_getreg_b32 s97, hwreg(HW_REG_XCC_ID)")
    A("v_mov_b32 v1, s97")
    A(f"buffer_store_dword v1, v0, s[92:95], s96 offen offset:80")

def gen_ln(A):
    name = "ln_kernel"
    kernel_begin(A, name)
    A("s_cmp_ge_u32 s2, 256")
    A("s_cbranch_scc1 L_ln_end")
    A(f"s_load_dwordx2 s[4:5], s[0:1], {KA_X}")
    A(f"s_load_dwordx2 s[6:7], s[0:1], {KA_WS}")
    A("v_lshrrev_b32 v1, 5, v0")
    A("v_and_b32 v2, 31, v0")
    A("v_lshlrev_b32 v3, 11, v1")
    A("v_lshl_add_u32 v3, v2, 4, v3")
    A("s_lshl_b32 s3, s2, 14")
    A("s_waitcnt lgkmcnt(0)")
    make_srd(A, 8, "s4", "s5", 4 * MB)
    for i in range(4):
        A(f"buffer_load_dwordx4 v[{8+4*i}:{11+4*i}], v3, s[8:11], s3 offen offset:{512*i}")
    make_srd(A, 12, "s6", "s7", 4 * MB)
    A("v_lshrrev_b32 v5, 2, v2")
    A("v_and_b32 v6, 1, v2")
    A("v_and_b32 v7, 3, v5")
    A("v_lshl_add_u32 v7, v7, 1, v6")
    A("v_xor_b32 v7, v7, v1")
    A("v_lshlrev_b32 v4, 9, v5")
    A("v_lshl_add_u32 v4, v6, 8, v4")
    A("v_lshl_add_u32 v4, v7, 4, v4")
    A("v_bfe_u32 v6, v2, 1, 1")
    A("v_lshl_add_u32 v4, v6, 3, v4")
    A("v_and_b32 v7, 3, v1")
    A("v_bfe_u32 v6, v0, 4, 1")
    A("v_lshl_add_u32 v7, v7, 1, v6")
    A("v_and_b32 v6, 7, v0")
    A("v_xor_b32 v7, v7, v6")
    A("v_lshlrev_b32 v5, 12, v1")
    A("v_bfe_u32 v6, v0, 3, 2")
    A("v_lshl_add_u32 v5, v6, 8, v5")
    A("v_lshl_add_u32 v5, v7, 4, v5")
    A("v_lshlrev_b32 v6, 4, v0")
    A("s_lshr_b32 s16, s2, 3")
    A("s_lshl_b32 s16, s16, 17")
    A("s_bfe_u32 s17, s2, 0x20001")
    A("s_lshl_b32 s17, s17, 10")
    A("s_add_u32 s16, s16, s17")
    A("s_and_b32 s17, s2, 1")
    A("s_lshl_b32 s17, s17, 7")
    A("s_add_u32 s16, s16, s17")
    F = 24
    for i in range(4):
        A(f"s_waitcnt vmcnt({3-i})")
        for d in range(4):
            s = 8 + 4 * i + d
            A(f"v_lshlrev_b32 v{F+2*(4*i+d)}, 16, v{s}")
            A(f"v_and_b32 v{F+2*(4*i+d)+1}, 0xffff0000, v{s}")
    A(f"v_pk_add_f32 v[56:57], v[{F}:{F+1}], v[{F+2}:{F+3}]")
    A(f"v_pk_add_f32 v[58:59], v[{F+4}:{F+5}], v[{F+6}:{F+7}]")
    for p in range(4, 16, 2):
        A(f"v_pk_add_f32 v[56:57], v[56:57], v[{F+2*p}:{F+2*p+1}]")
        A(f"v_pk_add_f32 v[58:59], v[58:59], v[{F+2*p+2}:{F+2*p+3}]")
    A("v_pk_add_f32 v[56:57], v[56:57], v[58:59]")
    A("v_add_f32 v56, v56, v57")
    def red32(r, t):
        for sh in (8, 4, 2, 1):
            A("s_nop 1")
            A(f"v_add_f32_dpp v{r}, v{r}, v{r} row_ror:{sh} row_mask:0xf bank_mask:0xf")
        A(f"v_mov_b32 v{t}, v{r}")
        A("s_nop 1")
        A(f"v_permlane16_swap_b32 v{r}, v{t}")
        A("s_nop 1")
        A(f"v_add_f32 v{r}, v{r}, v{t}")
    red32(56, 57)
    A(f"v_mul_f32 v56, {fhex(1.0/1024)}, v56")
    for p in range(16):
        A(f"v_pk_add_f32 v[{F+2*p}:{F+2*p+1}], v[{F+2*p}:{F+2*p+1}], v[56:57] op_sel_hi:[1,0] neg_lo:[0,1] neg_hi:[0,1]")
    A(f"v_pk_mul_f32 v[58:59], v[{F}:{F+1}], v[{F}:{F+1}]")
    A(f"v_pk_mul_f32 v[60:61], v[{F+2}:{F+3}], v[{F+2}:{F+3}]")
    for p in range(2, 16, 2):
        A(f"v_pk_fma_f32 v[58:59], v[{F+2*p}:{F+2*p+1}], v[{F+2*p}:{F+2*p+1}], v[58:59]")
        A(f"v_pk_fma_f32 v[60:61], v[{F+2*p+2}:{F+2*p+3}], v[{F+2*p+2}:{F+2*p+3}], v[60:61]")
    A("v_pk_add_f32 v[58:59], v[58:59], v[60:61]")
    A("v_add_f32 v58, v58, v59")
    red32(58, 59)
    A(f"v_mov_b32 v59, {fhex(1e-5)}")
    A(f"v_fmac_f32 v59, {fhex(1.0/1024)}, v58")
    A("v_rsq_f32 v58, v59")
    A("s_nop 0")
    for p in range(16):
        A(f"v_pk_mul_f32 v[{F+2*p}:{F+2*p+1}], v[{F+2*p}:{F+2*p+1}], v[58:59] op_sel_hi:[1,0]")
    for p in range(16):
        A(f"v_cvt_pk_bf16_f32 v{8+p}, v{F+2*p}, v{F+2*p+1}")
    for i in range(4):
        A(f"ds_write_b64 v4, v[{8+4*i}:{9+4*i}] offset:{4096*i}")
        A(f"ds_write_b64 v4, v[{10+4*i}:{11+4*i}] offset:{4096*i+128}")
    A("s_waitcnt lgkmcnt(0)")
    A("s_barrier")
    for i in range(4):
        A(f"ds_read_b128 v[{24+4*i}:{27+4*i}], v6 offset:{4096*i}")
    for i in range(4):
        A(f"s_waitcnt lgkmcnt({3-i})")
        A(f"buffer_store_dwordx4 v[{24+4*i}:{27+4*i}], v5, s[12:15], s16 offen")
        if i < 3:
            A("s_add_u32 s16, s16, 32768")
    A.label("L_ln_end")
    A("s_endpgm")
    return name, kernel_desc(name, 64, 32, 64), (256, 256, 16384)

def mainloop(A, P):
    MS, NT, U, RA, distA, BKS, S, DW, RB = (P[k] for k in ("MS", "NT", "U", "RA", "distA", "BKS", "S", "DW", "RB"))
    nsteps = P["nsteps"]
    assert U % RA == 0 and U % (BKS * S) == 0 and nsteps % U == 0 and U % RB == 0
    assert distA <= RA - 1 and DW <= S - 1 and BKS >= RB
    L = P["label"]
    isvm = lambda s: s.startswith("buffer_")
    log = []
    def emit_list(lst, tag):
        for s in lst:
            A(s)
            if isvm(s):
                log.append(tag)
    def need_count(tags):
        last = -1
        for i, t in enumerate(log):
            if t in tags:
                last = i
        assert last >= 0, tags
        return len(log) - 1 - last
    def stage_of_interval(q):
        return q + DW - 1
    def plan_step(i):
        chunks = []
        al = P["aload"]((i + distA) % RA)
        chunks.append((al, ("A", i + distA)))
        q = (i + RB) // BKS
        sub = (i + RB) % BKS
        sg = stage_of_interval(q)
        dl = P["dma"](sg % S)
        idx = [k for k, s in enumerate(dl) if isvm(s)]
        per = len(idx) // BKS
        assert per * BKS == len(idx)
        lo = 0 if sub == 0 else idx[sub * per - 1] + 1
        hi = len(dl) if sub == BKS - 1 else idx[(sub + 1) * per - 1] + 1
        chunks.append((dl[lo:hi], ("W", sg)))
        return chunks
    first_step = -max(distA, DW * BKS + RB)
    for i in range(first_step, 0):
        for lst, tag in plan_step(i):
            if tag[1] >= 0:
                emit_list(lst, tag)
    if "pro_mid" in P:
        P["pro_mid"](len(log))
    for i in range(-RB, 0):
        if (i + RB) % BKS == 0:
            A(f"s_waitcnt vmcnt({min(63, need_count({('W', (i + RB) // BKS)}))})")
            A("s_barrier")
        t = i + RB
        for j in range(NT):
            for s in P["dsread"]((t // BKS) % S, t % BKS, j, t % RB):
                A(s)
    A(f"s_mov_b32 {P['scnt']}, {nsteps // U}")
    A("s_waitcnt lgkmcnt(0)")
    stamp(A, 1)
    A(".p2align 6")
    A.label(L + "_loop")
    waits = []
    for rep in range(2):
        Asave = A.lines
        if rep == 1:
            A.lines = []
        w = []
        for ii in range(U):
            i = rep * U + ii
            tags = {("A", i)}
            bar = (i + RB) % BKS == 0
            if bar:
                tags.add(("W", (i + RB) // BKS))
            n = min(need_count({t}) for t in tags)
            w.append(n)
            A(f"s_waitcnt vmcnt({min(63, n)})")
            if bar:
                A("s_barrier")
            fill = []
            for lst, tag in plan_step(i):
                cur = []
                for s in lst:
                    cur.append(s)
                    if isvm(s):
                        fill.append((cur, tag)); cur = []
                if cur:
                    fill.append((cur, tag))
            nm = NT * MS
            cand = [k for k in range(nm) if (k % MS) != MS - 1 or MS == 1]
            pos = {}
            for f in range(len(fill)):
                k = cand[(f * len(cand)) // len(fill)]
                pos.setdefault(k, []).append(fill[f])
            t = i + RB
            lg_every = P.get("lg_every", 4)
            for j in range(NT):
                if j % lg_every == 0:
                    jl = min(NT - 1, j + lg_every - 1)
                    newer = (RB * NT - 1) - (jl - j)
                    A(f"s_waitcnt lgkmcnt({min(15, 2 * newer)})")
                for m in range(MS):
                    k = j * MS + m
                    a, b = ar(P["bfrag"](i % RB, j), 4), ar(P["afrag"](i % RA, m), 4)
                    if P["swap"](j):
                        a, b = b, a
                    if not P.get("no_mfma"):
                        A(f"v_mfma_f32_16x16x32_bf16 {P['acc'](j, m)}, {a}, {b}, {P['acc'](j, m)}")
                    for lst, tag in pos.get(k, []):
                        emit_list(lst, tag)
                if not P.get("no_ds"):
                    for s in P["dsread"]((t // BKS) % S, t % BKS, j, t % RB):
                        A(s)
        waits.append(w)
        if rep == 1:
            A.lines = Asave
        else:
            A(f"s_sub_u32 {P['scnt']}, {P['scnt']}, 1")
            A(f"s_cmp_lg_u32 {P['scnt']}, 0")
            A(f"s_cbranch_scc1 {L}_loop")
    assert waits[0] == waits[1], waits
    stamp(A, 2)

def gen_gemm1(A, cfg):
    name = "gemm1_kernel"
    kernel_begin(A, name)
    U, RA, distA, S, DW = cfg["U"], cfg["RA"], cfg["distA"], cfg["S"], cfg["DW"]
    STG = 16384
    ACC0 = 48
    acc = lambda j, m: vr(ACC0 + (j * 4 + m) * 4, 4)
    accb = lambda j, m: ACC0 + (j * 4 + m) * 4
    BF0 = 16 * RA
    A("s_cmp_ge_u32 s2, 256")
    A("s_cbranch_scc1 L_g1_end")
    stamp(A, 0)
    A(f"s_load_dwordx2 s[16:17], s[0:1], {KA_WQKV}")
    A(f"s_load_dwordx2 s[18:19], s[0:1], {KA_W1}")
    A(f"s_load_dwordx2 s[20:21], s[0:1], {KA_B1}")
    A(f"s_load_dwordx2 s[22:23], s[0:1], {KA_WS}")
    A("v_lshrrev_b32 v1, 6, v0")
    A("v_and_b32 v0, 63, v0")
    A("s_nop 0")
    A("v_readfirstlane_b32 s24, v1")
    if cfg.get("map", "b") == "b":
        A("s_and_b32 s25, s2, 1")
        A("s_lshl_b32 s25, s25, 2")
        A("s_bfe_u32 s26, s2, 0x20003")
        A("s_add_u32 s25, s25, s26")
        A("s_bfe_u32 s26, s2, 0x20001")
        A("s_lshl_b32 s26, s26, 3")
        A("s_lshr_b32 s27, s2, 5")
        A("s_add_u32 s26, s26, s27")
    else:
        A("s_bfe_u32 s25, s2, 0x30003")
        A("s_and_b32 s26, s2, 7")
        A("s_lshl_b32 s26, s26, 2")
        A("s_lshr_b32 s27, s2, 6")
        A("s_add_u32 s26, s26, s27")
    wfl, afl = cfg.get("wfl", ""), cfg.get("afl", "")
    A("s_and_b32 s27, s26, 1")
    A("v_lshlrev_b32 v1, 4, v0")
    A("v_lshrrev_b32 v2, 2, v0")
    A("v_and_b32 v3, 3, v0")
    A("v_lshlrev_b32 v3, 3, v3")
    A("v_mul_u32_u24 v4, 192, v2")
    A("v_add_u32 v4, v4, v3")
    A("v_bfe_u32 v5, v0, 4, 1")
    A("v_lshl_add_u32 v6, v5, 5, v4")
    A("v_xor_b32 v5, 1, v5")
    A("v_lshl_add_u32 v7, v5, 5, v4")
    A("v_mul_u32_u24 v8, 224, v2")
    A("v_add_u32 v8, v8, v3")
    A("v_add_u32 v8, 8192, v8")
    if S * STG > 65536:
        A("v_add_u32 v9, 0x10000, v6")
        A("v_add_u32 v10, 0x10000, v7")
        A("v_add_u32 v11, 0x10000, v8")
    A("s_waitcnt lgkmcnt(0)")
    A("s_lshl_b32 s28, s25, 2")
    A("s_add_u32 s28, s28, s24")
    A("s_lshl_b32 s28, s28, 17")
    A("s_add_u32 s4, s22, s28")
    A("s_addc_u32 s5, s23, 0")
    make_srd(A, 4, "s4", "s5", 0 if cfg.get("skipA") else 131072)
    make_srd(A, 28, "s20", "s21", 7168)
    A("v_lshrrev_b32 v2, 4, v0")
    A("v_lshlrev_b32 v2, 3, v2")
    A("s_mul_i32 s32, s26, 224")
    A("s_lshl_b32 s33, s27, 5")
    A("s_add_u32 s33, s33, s32")
    A("s_cmp_eq_u32 s27, 0")
    A("s_cselect_b32 s34, 192, 0")
    A("s_add_u32 s34, s34, s32")
    for b in range(6):
        A(f"buffer_load_dwordx2 v[{16+2*b}:{17+2*b}], v2, s[28:31], s33 offen offset:{32*b}")
    A(f"buffer_load_dwordx2 v[28:29], v2, s[28:31], s34 offen")
    A("s_cmp_ge_u32 s24, 2")
    A("s_cbranch_scc1 L_g1_w1setup")
    make_srd(A, 8, "s16", "s17", 0 if cfg.get("skipW") else 1024 * 6144)
    A(f"s_mov_b32 s14, {32*6144}")
    A(f"s_mul_i32 s13, s24, {16*6144}")
    A("s_lshl_b32 s35, s26, 6")
    A("s_add_u32 s13, s13, s35")
    for p in range(3):
        A(f"v_add_u32 v30, {64*p}, v0")
        A("v_mul_u32_u24 v31, 43691, v30")
        A("v_lshrrev_b32 v31, 19, v31")
        A("v_mul_u32_u24 v32, 12, v31")
        A("v_sub_u32 v32, v30, v32")
        A("v_lshrrev_b32 v33, 2, v32")
        A("v_and_b32 v32, 3, v32")
        A("v_bfe_u32 v34, v31, 2, 1")
        A("v_lshlrev_b32 v34, 1, v34")
        A("v_xor_b32 v32, v32, v34")
        A("v_mul_u32_u24 v31, 6144, v31")
        A("v_lshl_add_u32 v31, v33, 11, v31")
        A("v_lshl_add_u32 v31, v32, 4, v31")
        A(f"v_subrev_u32 v{12+p}, {1024*p}, v31")
    A("v_mov_b32 v15, 0x7f000000")
    A("s_branch L_g1_setupdone")
    A.label("L_g1_w1setup")
    make_srd(A, 8, "s18", "s19", 0 if cfg.get("skipW") else 1024 * 7168)
    A(f"s_mov_b32 s14, {32*7168}")
    A("s_mov_b32 s13, s32")
    A("s_sub_u32 s35, s24, 2")
    A("s_lshl_b32 s35, s35, 8")
    for p in range(4):
        A(f"v_add_u32 v30, {64*p}, v0")
        A("v_add_u32 v30, s35, v30")
        A("v_mul_u32_u24 v31, 4682, v30")
        A("v_lshrrev_b32 v31, 16, v31")
        A("v_mul_u32_u24 v32, 14, v31")
        A("v_sub_u32 v32, v30, v32")
        A("v_lshl_add_u32 v32, s27, 1, v32")
        A("v_subrev_u32 v33, 14, v32")
        A("v_cmp_le_u32 vcc, 14, v32")
        A("s_nop 1")
        A("v_cndmask_b32 v32, v32, v33, vcc")
        A("v_mul_u32_u24 v33, 7168, v31")
        A("v_lshl_add_u32 v33, v32, 4, v33")
        A(f"v_subrev_u32 v33, {1024*p}, v33")
        A("v_mov_b32 v34, 0x7f000000")
        A("v_cmp_le_u32 vcc, 32, v31")
        A("s_nop 1")
        A(f"v_cndmask_b32 v{12+p}, v33, v34, vcc")
    A.label("L_g1_setupdone")
    A("s_lshl_b32 s15, s24, 12")
    ph = cfg.get("phase", 0)
    if ph == 0:
        A("s_mov_b32 s40, 0")
    elif ph == 8:
        A("s_and_b32 s40, s25, 3")
        A("s_lshl_b32 s40, s40, 1")
        A("s_xor_b32 s40, s40, s26")
        A("s_and_b32 s40, s40, 7")
    elif ph == 16:
        A("s_and_b32 s40, s25, 3")
        A("s_mul_i32 s40, s40, 5")
        A("s_lshl_b32 s41, s26, 1")
        A("s_xor_b32 s40, s40, s41")
        A("s_and_b32 s40, s40, 15")
    elif ph == 4:
        A("s_xor_b32 s40, s25, s26")
        A("s_and_b32 s40, s40, 3")
    A("s_lshl_b32 s41, s40, 12")
    A("s_mov_b32 s42, 0")
    A("s_mov_b32 s43, 0")
    A("s_mov_b32 s44, s13")

    def aload(slot):
        l = ["s_xor_b32 s12, s42, s41"]
        l += [f"buffer_load_dwordx4 {ar(slot*16+4*m,4)}, v1, s[4:7], s12 offen offset:{1024*m} {afl}" for m in range(4)]
        l.append("s_add_u32 s42, s42, 4096")
        return l
    def dma(slot):
        l = [f"s_add_u32 m0, s15, {slot*STG}", "s_xor_b32 s13, s43, s40", "s_mul_i32 s13, s13, s14", "s_add_u32 s13, s13, s44"]
        l += [f"buffer_load_dwordx4 v{12+p}, s[8:11], s13 offen offset:{1024*p} {wfl} lds" for p in range(4)]
        l.append("s_add_u32 s43, s43, 1")
        return l
    def dsread(slot, ks, j, par):
        off = slot * STG
        hi = off >= 65536
        off &= 65535
        b = BF0 + 4 * j
        if j < 6:
            base = (9 if hi else 6) + (j & 1)
            o = off + (j >> 1) * 64
            return [f"ds_read_b64_tr_b16 {ar(b,2)}, v{base} offset:{o}",
                    f"ds_read_b64_tr_b16 {ar(b+2,2)}, v{base} offset:{o+4096}"]
        base = 11 if hi else 8
        o = off + (j - 6) * 32
        return [f"ds_read_b64_tr_b16 {ar(b,2)}, v{base} offset:{o}",
                f"ds_read_b64_tr_b16 {ar(b+2,2)}, v{base} offset:{o+3584}"]
    def pro_mid(nlog):
        for j in range(6):
            for m in range(4):
                for r in range(4):
                    A(f"v_mov_b32 v{accb(j,m)+r}, 0")
        A(f"s_waitcnt vmcnt({min(63,nlog)})")
        for b in range(7):
            d = accb(6 + b, 0)
            A(f"v_lshlrev_b32 v{d}, 16, v{16+2*b}")
            A(f"v_and_b32 v{d+1}, 0xffff0000, v{16+2*b}")
            A(f"v_lshlrev_b32 v{d+2}, 16, v{17+2*b}")
            A(f"v_and_b32 v{d+3}, 0xffff0000, v{17+2*b}")
            for m in range(1, 4):
                for r in range(4):
                    A(f"v_mov_b32 v{accb(6+b,m)+r}, v{d+r}")
    P = dict(MS=4, NT=13, U=U, nsteps=32, RA=RA, distA=distA, BKS=1, S=S, DW=DW, RB=1, acc=acc,
             afrag=lambda slot, m: slot * 16 + 4 * m, bfrag=lambda par, j: BF0 + 4 * j,
             swap=lambda j: j in (4, 5), aload=aload, dma=dma, dsread=dsread, label="L_g1", scnt="s36",
             pro_mid=pro_mid, lg_every=cfg.get("lg_every", 5), no_mfma=cfg.get("no_mfma"), no_ds=cfg.get("no_ds"))
    mainloop(A, P)
    make_srd(A, 28, "s22", "s23", WS_BYTES)
    A("s_lshl_b32 s32, s26, 17")
    A("s_lshl_b32 s33, s25, 14")
    A("s_add_u32 s32, s32, s33")
    A("s_lshl_b32 s33, s24, 12")
    A("s_add_u32 s32, s32, s33")
    A(f"s_add_u32 s33, s32, {WS_K}")
    A(f"s_add_u32 s34, s32, {WS_V}")
    A(f"s_add_u32 s32, s32, {WS_Q}")
    qs = (32 ** -0.5) * math.log2(math.e)
    A(f"v_mov_b32 v2, {fhex(qs)}")
    A("s_nop 7")
    T = 16
    nq = [0]
    def tq():
        b = T + 4 * (nq[0] % 8); nq[0] += 1
        return b
    for m in range(4):
        t = tq()
        for h in range(2):
            a = accb(2 + h, m)
            A(f"v_cvt_pk_bf16_f32 v{t+2*h}, v{a}, v{a+1}")
            A(f"v_cvt_pk_bf16_f32 v{t+2*h+1}, v{a+2}, v{a+3}")
        A(f"buffer_store_dwordx4 {vr(t,4)}, v1, s[28:31], s33 offen offset:{1024*m}")
    for p in range(2):
        for tt in range(2):
            t = tq()
            for h in range(2):
                a = accb(4 + tt, 2 * p + h)
                A(f"v_cvt_pk_bf16_f32 v{t+2*h}, v{a}, v{a+1}")
                A(f"v_cvt_pk_bf16_f32 v{t+2*h+1}, v{a+2}, v{a+3}")
            A(f"buffer_store_dwordx4 {vr(t,4)}, v1, s[28:31], s34 offen offset:{2048*p+1024*tt}")
    for m in range(4):
        t = tq()
        for h in range(2):
            a = accb(h, m)
            A(f"v_pk_mul_f32 {vr(a,2)}, {vr(a,2)}, v[2:3] op_sel_hi:[1,0]")
            A(f"v_pk_mul_f32 {vr(a+2,2)}, {vr(a+2,2)}, v[2:3] op_sel_hi:[1,0]")
            A(f"v_cvt_pk_bf16_f32 v{t+2*h}, v{a}, v{a+1}")
            A(f"v_cvt_pk_bf16_f32 v{t+2*h+1}, v{a+2}, v{a+3}")
        A(f"buffer_store_dwordx4 {vr(t,4)}, v1, s[28:31], s32 offen offset:{1024*m}")
    A("s_lshl_b32 s32, s25, 3")
    A("s_lshl_b32 s33, s24, 1")
    A("s_add_u32 s32, s32, s33")
    A(f"s_mul_i32 s32, s32, {AH_G}")
    A(f"s_add_u32 s32, s32, {WS_AH}")
    A("s_mul_i32 s33, s26, 7")
    A("s_add_u32 s33, s33, s27")
    A("s_lshr_b32 s33, s33, 1")
    A("s_lshl_b32 s33, s33, 11")
    A("s_add_u32 s32, s32, s33")
    A("s_mul_i32 s33, s27, 8184")
    A("s_sub_u32 s33, s32, s33")
    A("s_add_u32 s33, s33, 6144")
    c1 = -2.0 * math.sqrt(2.0 / math.pi) * math.log2(math.e)
    c2 = c1 * 0.044715
    A(f"v_mov_b32 v2, {fhex(c1)}")
    A(f"v_mov_b32 v4, {fhex(c2)}")
    def gelu_quad(a, e):
        for h in (0, 2):
            A(f"v_pk_mul_f32 {vr(e+h,2)}, {vr(a+h,2)}, {vr(a+h,2)}")
        for h in (0, 2):
            A(f"v_pk_fma_f32 {vr(e+h,2)}, {vr(e+h,2)}, v[4:5], v[2:3] op_sel_hi:[1,0,0]")
        for h in (0, 2):
            A(f"v_pk_mul_f32 {vr(e+h,2)}, {vr(e+h,2)}, {vr(a+h,2)}")
        for r in range(4):
            A(f"v_exp_f32 v{e+r}, v{e+r}")
        for h in (0, 2):
            A(f"v_pk_add_f32 {vr(e+h,2)}, {vr(e+h,2)}, 1.0 op_sel_hi:[1,0]")
        for r in range(4):
            A(f"v_rcp_f32 v{e+r}, v{e+r}")
        for h in (0, 2):
            A(f"v_pk_mul_f32 {vr(a+h,2)}, {vr(a+h,2)}, {vr(e+h,2)}")
    for m in range(4):
        A(f"s_add_u32 s34, s32, {(m>>1)*AH_G}")
        A(f"s_add_u32 s35, s34, 4096")
        A(f"s_add_u32 s37, s33, {(m>>1)*AH_G}")
        for i in range(3):
            t = tq()
            for h in range(2):
                a = accb(6 + 2 * i + h, m)
                gelu_quad(a, 8 + 4 * h)
                A(f"v_cvt_pk_bf16_f32 v{t+2*h}, v{a}, v{a+1}")
                A(f"v_cvt_pk_bf16_f32 v{t+2*h+1}, v{a+2}, v{a+3}")
            so, off = ("s34", i * 2048 + (m & 1) * 1024) if i < 2 else ("s35", (m & 1) * 1024)
            A(f"buffer_store_dwordx4 {vr(t,4)}, v1, s[28:31], {so} offen offset:{off}")
        t = tq()
        a = accb(12, m)
        gelu_quad(a, 8)
        A(f"v_cvt_pk_bf16_f32 v{t}, v{a}, v{a+1}")
        A(f"v_cvt_pk_bf16_f32 v{t+1}, v{a+2}, v{a+3}")
        A(f"buffer_store_dwordx2 {vr(t,2)}, v1, s[28:31], s37 offen offset:{(m&1)*1024}")
    stamp(A, 3)
    stamp_out(A, 5, 1)
    A.label("L_g1_end")
    A("s_endpgm")
    nacc = BF0 + 52
    return name, kernel_desc(name, 256 + nacc, 100, 256), (256, 256, S * STG)

def gen_attn(A):
    name = "attn_kernel"
    kernel_begin(A, name)
    A("s_cmp_ge_u32 s2, 256")
    A("s_cbranch_scc1 L_at_end")
    stamp(A, 0)
    A(f"s_load_dwordx2 s[22:23], s[0:1], {KA_WS}")
    A("v_lshrrev_b32 v1, 6, v0")
    A("v_and_b32 v0, 63, v0")
    A("s_nop 0")
    A("v_readfirstlane_b32 s24, v1")
    A("s_and_b32 s25, s2, 7")
    A("s_lshr_b32 s26, s2, 3")
    A("v_lshlrev_b32 v1, 4, v0")
    A("s_waitcnt lgkmcnt(0)")
    A("s_lshl_b32 s27, s26, 17")
    for d, off in ((4, WS_K), (8, WS_V), (12, WS_Q)):
        A(f"s_add_u32 s{d}, s22, s27")
        A(f"s_addc_u32 s{d+1}, s23, 0")
        A(f"s_add_u32 s{d}, s{d}, {off}")
        A(f"s_addc_u32 s{d+1}, s{d+1}, 0")
        make_srd(A, d, f"s{d}", f"s{d+1}", 131072)
    A("s_lshl_b32 s28, s25, 14")
    A("s_lshl_b32 s29, s24, 12")
    A("s_add_u32 s28, s28, s29")
    A("s_sub_u32 s28, s28, 16384")
    A("s_cmp_lt_i32 s28, 0")
    A("s_cselect_b32 s28, 0x40000000, s28")
    A("s_mov_b32 m0, s29")
    A("s_nop 0")
    for p in range(4):
        A(f"buffer_load_dwordx4 v1, s[4:7], s28 offen offset:{1024*p} lds")
    A("s_lshl_b32 s30, s25, 14")
    A("s_lshl_b32 s31, s24, 11")
    A("s_add_u32 s30, s30, s31")
    Q = 8
    for s in range(2):
        A(f"buffer_load_dwordx4 {vr(Q+4*s,4)}, v1, s[12:15], s30 offen offset:{1024*s}")
    A("s_add_u32 m0, s29, 32768")
    A("s_nop 0")
    for p in range(4):
        A(f"buffer_load_dwordx4 v1, s[8:11], s28 offen offset:{1024*p} lds")
    MU, MC = 16, 20
    A("v_and_b32 v2, 15, v0")
    A("v_lshrrev_b32 v3, 4, v0")
    A("v_lshlrev_b32 v3, 2, v3")
    A(f"v_mov_b32 v4, {fhex(NEG)}")
    for r in range(4):
        A(f"v_add_u32 v5, {r}, v3")
        A("v_cmp_lt_u32 vcc, v2, v5")
        A("s_nop 1")
        A(f"v_cndmask_b32 v{MU+r}, v4, 0, vcc" if False else f"v_cndmask_b32_e64 v{MU+r}, v4, 0, vcc")
        A(f"v_cndmask_b32_e64 v{MC+r}, 0, v4, vcc")
    ONES = 24
    for r in range(4):
        A(f"v_mov_b32 v{ONES+r}, 0x3f803f80")
    A("s_sub_u32 s32, 8, s24")
    A("s_cmp_eq_u32 s25, 0")
    A("s_cselect_b32 s32, s32, 0")
    A("v_add_u32 v2, s31, v1")
    CQ = 28
    KR = 40
    OA = 64
    LA = 80
    S0 = 88
    Sreg = lambda kt, s: S0 + (kt * 2 + s) * 4
    for r in range(24):
        A(f"v_mov_b32 v{OA+r}, 0")
    A("s_waitcnt vmcnt(4)")
    A("s_barrier")
    stamp(A, 1)
    NR = 6
    def kread(kt):
        A(f"ds_read_b128 {vr(KR+4*(kt%NR),4)}, v2 offset:{1024*kt}")
    for kt in range(NR - 1):
        kread(kt)
    for kp in range(9):
        cq = CQ + 4 * (kp & 1)
        if kp < 8:
            A(f"s_cmp_gt_i32 s32, {kp}")
            A(f"s_cselect_b32 s33, {fhex(NEG)}, 0")
            for r in range(4):
                A(f"v_mov_b32 v{cq+r}, s33")
            if kp == 0:
                for r in range(4):
                    A(f"v_min_f32 v{36+r}, s33, v{MU+r}")
        for h in range(2):
            kt = 2 * kp + h
            if kt + NR - 1 < 18:
                kread(kt + NR - 1)
            outstanding = min(17, kt + NR - 1) - kt
            A(f"s_waitcnt lgkmcnt({outstanding})")
            if h == 0:
                A("s_nop 0")
            for s in range(2):
                d = kt - s
                if d < 0 or d > 16:
                    continue
                if d == 0:
                    c = vr(36, 4)
                elif d == 16:
                    c = vr(MC, 4)
                elif kp == 8:
                    c = "0"
                else:
                    c = vr(cq, 4)
                A(f"v_mfma_f32_16x16x32_bf16 {vr(Sreg(kt,s),4)}, {vr(KR+4*(kt%NR),4)}, {vr(Q+4*s,4)}, {c}")
    A("s_waitcnt vmcnt(0)")
    A("s_barrier")
    stamp(A, 2)
    def vread(i):
        A(f"ds_read_b128 {vr(KR+4*(i%NR),4)}, v2 offset:{32768+1024*i}")
    A("s_nop 7")
    for i in range(NR):
        vread(i)
    MX = 4
    for s in range(2):
        regs = []
        for kt in range(18):
            if 0 <= kt - s <= 16:
                regs += [Sreg(kt, s) + r for r in range(4)]
        m = MX + 2 * s
        A(f"v_max3_f32 v{m}, v{regs[0]}, v{regs[1]}, v{regs[2]}")
        A(f"v_max3_f32 v{m+1}, v{regs[3]}, v{regs[4]}, v{regs[5]}")
        k = 6; alt = 0
        while k < len(regs):
            A(f"v_max3_f32 v{m+alt}, v{m+alt}, v{regs[k]}, v{regs[k+1]}")
            k += 2; alt ^= 1
        A(f"v_max_f32 v{m}, v{m}, v{m+1}")
    for sw in ("v_permlane32_swap_b32", "v_permlane16_swap_b32"):
        for s in range(2):
            A(f"v_mov_b32 v{MX+2*s+1}, v{MX+2*s}")
        A("s_nop 1")
        for s in range(2):
            A(f"{sw} v{MX+2*s}, v{MX+2*s+1}")
        A("s_nop 1")
        for s in range(2):
            A(f"v_max_f32 v{MX+2*s}, v{MX+2*s}, v{MX+2*s+1}")
    for kp in range(9):
        for s in range(2):
            dst = Sreg(2 * kp, s)
            for h in range(2):
                kt = 2 * kp + h
                a = Sreg(kt, s)
                if 0 <= kt - s <= 16:
                    for e in (0, 2):
                        A(f"v_pk_add_f32 {vr(a+e,2)}, {vr(a+e,2)}, {vr(MX+2*s,2)} op_sel_hi:[1,0] neg_lo:[0,1] neg_hi:[0,1]")
                    for r in range(4):
                        A(f"v_exp_f32 v{a+r}, v{a+r}")
            for h in range(2):
                kt = 2 * kp + h
                a = Sreg(kt, s)
                if 0 <= kt - s <= 16:
                    if h == 1 or kt - s == 16:
                        A("s_nop 0")
                    A(f"v_cvt_pk_bf16_f32 v{dst+2*h}, v{a}, v{a+1}")
                    A(f"v_cvt_pk_bf16_f32 v{dst+2*h+1}, v{a+2}, v{a+3}")
                else:
                    A(f"v_mov_b32 v{dst+2*h}, 0")
                    A(f"v_mov_b32 v{dst+2*h+1}, 0")
        issued = min(18, 2 * kp + NR)
        A(f"s_waitcnt lgkmcnt({issued - (2*kp+2)})")
        A("s_nop 0")
        for s in range(2):
            p = vr(Sreg(2 * kp, s), 4)
            for t in range(2):
                o = vr(OA + (t * 2 + s) * 4, 4)
                A(f"v_mfma_f32_16x16x32_bf16 {o}, {vr(KR+4*((2*kp+t)%NR),4)}, {p}, {o}")
            A(f"v_mfma_f32_16x16x32_bf16 {vr(LA+4*s,4)}, {vr(ONES,4)}, {p}, {vr(LA+4*s,4)}")
        for t in range(2):
            if 2 * kp + NR + t < 18:
                vread(2 * kp + NR + t)
    make_srd(A, 4, "s22", "s23", WS_BYTES)
    A("s_lshl_b32 s28, s25, 3")
    A("s_add_u32 s28, s28, s24")
    A(f"s_mul_i32 s28, s28, {AH_G}")
    A("s_lshl_b32 s29, s26, 11")
    A("s_add_u32 s28, s28, s29")
    A(f"s_add_u32 s28, s28, {WS_AH + 112*2048}")
    A("s_nop 3")
    for s in range(2):
        A(f"v_rcp_f32 v{MX+2*s}, v{LA+4*s}")
    A("s_nop 0")
    for s in range(2):
        for t in range(2):
            o = OA + (t * 2 + s) * 4
            for e in (0, 2):
                A(f"v_pk_mul_f32 {vr(o+e,2)}, {vr(o+e,2)}, {vr(MX+2*s,2)} op_sel_hi:[1,0]")
            A(f"v_cvt_pk_bf16_f32 v{8+4*s+2*t}, v{o}, v{o+1}")
            A(f"v_cvt_pk_bf16_f32 v{8+4*s+2*t+1}, v{o+2}, v{o+3}")
        A(f"buffer_store_dwordx4 {vr(8+4*s,4)}, v1, s[4:7], s28 offen offset:{1024*s}")
    stamp(A, 3)
    stamp_out(A, 5, 2)
    A.label("L_at_end")
    A("s_endpgm")
    return name, kernel_desc(name, 232, 100, 232), (256, 512, 65536)

def gen_gemm2(A, cfg):
    name = "gemm2_kernel"
    kernel_begin(A, name)
    TN = 64
    NT = TN // 16
    CB = TN // 64
    U, RA, distA, S, DW, RB = cfg["U"], cfg["RA"], cfg["distA"], cfg["S"], cfg["DW"], cfg["RB"]
    BKS = 2
    wfl, afl = cfg.get("wfl", ""), cfg.get("afl", "")
    GRP = CB * 2048
    STG = 4 * GRP
    ACC0 = 64
    accb = lambda j, m: ACC0 + (j * 2 + m) * 4
    acc = lambda j, m: vr(accb(j, m), 4)
    BF0 = 8 * RA
    A("s_cmp_ge_u32 s2, 256")
    A("s_cbranch_scc1 L_g2_end")
    stamp(A, 0)
    A(f"s_load_dwordx2 s[16:17], s[0:1], {KA_W2}")
    A(f"s_load_dwordx2 s[18:19], s[0:1], {KA_WO}")
    A(f"s_load_dwordx2 s[20:21], s[0:1], {KA_B2}")
    A(f"s_load_dwordx2 s[22:23], s[0:1], {KA_WS}")
    A(f"s_load_dwordx2 s[40:41], s[0:1], {KA_X}")
    A(f"s_load_dwordx2 s[42:43], s[0:1], {KA_OUT}")
    A("v_lshrrev_b32 v1, 6, v0")
    A("v_and_b32 v0, 63, v0")
    A("s_nop 0")
    A("v_readfirstlane_b32 s24, v1")
    A("s_and_b32 s25, s2, 3")
    A("s_lshl_b32 s25, s25, 2")
    A("s_bfe_u32 s26, s2, 0x20003")
    A("s_add_u32 s25, s25, s26")
    A("s_bfe_u32 s26, s2, 0x10002")
    A("s_lshl_b32 s26, s26, 3")
    A("s_lshr_b32 s27, s2, 5")
    A("s_add_u32 s26, s26, s27")
    A("v_lshlrev_b32 v1, 4, v0")
    A("v_lshrrev_b32 v2, 2, v0")
    A("v_and_b32 v3, 3, v0")
    A("v_lshlrev_b32 v3, 3, v3")
    A("v_lshl_add_u32 v3, v2, 7, v3")
    A("v_bfe_u32 v2, v0, 3, 2")
    for t in range(4):
        A(f"v_xor_b32 v8, {t}, v2")
        A(f"v_lshl_add_u32 v{4+t}, v8, 5, v3")
    A("v_lshrrev_b32 v2, 3, v0")
    A("v_bfe_u32 v3, v0, 1, 2")
    A("v_bfe_u32 v12, v0, 4, 2")
    A("v_xor_b32 v3, v3, v12")
    A("v_lshlrev_b32 v2, 11, v2")
    A("v_lshl_add_u32 v2, v3, 5, v2")
    A("v_and_b32 v3, 1, v0")
    A("v_lshl_add_u32 v2, v3, 4, v2")
    for cb in range(CB):
        for h in range(2):
            p = cb * 2 + h
            A(f"v_add_u32 v{8+p}, {4096 + h*16384 + cb*128 - p*1024}, v2")
    A("s_waitcnt lgkmcnt(0)")
    A("s_lshl_b32 s28, s25, 2")
    A("s_add_u32 s28, s28, s24")
    A(f"s_mul_i32 s29, s28, {AH_G}")
    A(f"s_add_u32 s29, s29, {WS_AH}")
    A("s_add_u32 s4, s22, s29")
    A("s_addc_u32 s5, s23, 0")
    make_srd(A, 4, "s4", "s5", 0 if cfg.get("skipA") else AH_G)
    A("s_sub_u32 s8, s16, 4096")
    A("s_subb_u32 s9, s17, 0")
    make_srd(A, 8, "s8", "s9", 0 if cfg.get("skipW") else 3584 * 2048 + 4096)
    A("s_sub_u32 s18, s18, 4096")
    A("s_subb_u32 s19, s19, 0")
    A("s_and_b32 s19, s19, 0xffff")
    A(f"s_mul_i32 s13, s24, {16*2048}")
    A(f"s_mul_i32 s30, s26, {TN*2}")
    A("s_add_u32 s13, s13, s30")
    A("s_mov_b32 s14, s13")
    A(f"s_mov_b32 s38, {3584*2048}")
    A(f"s_mul_i32 s15, s24, {GRP}")
    ph = cfg.get("phase", 0)
    if ph == 0:
        A("s_mov_b32 s52, 0")
    elif ph == 8:
        A("s_and_b32 s52, s25, 3")
        A("s_lshl_b32 s52, s52, 1")
        A("s_xor_b32 s52, s52, s26")
        A("s_and_b32 s52, s52, 7")
    elif ph == 4:
        A("s_xor_b32 s52, s25, s26")
        A("s_and_b32 s52, s52, 3")
    A("s_lshl_b32 s53, s52, 12")
    A("s_lshl_b32 s52, s52, 17")
    A("s_mov_b32 s54, 0")
    A("s_mov_b32 s55, 0")
    make_srd(A, 44, "s40", "s41", 4 * MB)
    make_srd(A, 48, "s20", "s21", 2048)
    A("v_and_b32 v2, 15, v0")
    A("v_lshlrev_b32 v2, 11, v2")
    A("v_lshrrev_b32 v3, 4, v0")
    A("v_lshlrev_b32 v3, 3, v3")
    A("v_add_u32 v2, v2, v3")
    A("s_lshl_b32 s31, s28, 16")
    A("s_add_u32 s31, s31, s30")
    A("s_add_u32 s32, s31, 32768")
    XB, BB = 16, 48
    for j in range(NT):
        A(f"buffer_load_dwordx2 {vr(BB+2*j,2)}, v3, s[48:51], s30 offen offset:{32*j}")
    for m in range(2):
        for j in range(NT):
            A(f"buffer_load_dwordx2 {vr(XB+(j*2+m)*2,2)}, v2, s[44:47], {'s31' if m==0 else 's32'} offen offset:{32*j}")
    def aload(slot):
        l = ["s_xor_b32 s12, s54, s53"]
        l += [f"buffer_load_dwordx4 {ar(slot*8+4*m,4)}, v1, s[4:7], s12 offen offset:{1024*m} {afl}" for m in range(2)]
        l.append("s_add_u32 s54, s54, 2048")
        return l
    def dma(slot):
        l = [f"s_add_u32 m0, s15, {slot*STG}",
             "s_cmp_eq_u32 s55, s38",
             "s_cselect_b32 s8, s18, s8",
             "s_cselect_b32 s9, s19, s9",
             f"s_cselect_b32 s10, {0 if cfg.get('skipW') else 1024*2048+4096}, s10",
             "s_cselect_b32 s55, 0, s55",
             "s_cselect_b32 s38, -1, s38",
             "s_xor_b32 s13, s55, s52",
             "s_add_u32 s13, s13, s14"]
        l += [f"buffer_load_dwordx4 v{8+p}, s[8:11], s13 offen offset:{1024*p} {wfl} lds" for p in range(2 * CB)]
        l.append(f"s_add_u32 s55, s55, {64*2048}")
        return l
    def dsread(slot, ks, j, par):
        b = BF0 + (par * NT + j) * 4
        o = slot * STG + (2 * ks) * GRP + (j >> 2) * 2048
        assert o + GRP < 65536
        return [f"ds_read_b64_tr_b16 {ar(b,2)}, v{4+(j&3)} offset:{o}",
                f"ds_read_b64_tr_b16 {ar(b+2,2)}, v{4+(j&3)} offset:{o+GRP}"]
    def pro_mid(nlog):
        A(f"s_waitcnt vmcnt({min(63,nlog)})")
        for j in range(NT):
            A(f"v_lshlrev_b32 v12, 16, v{BB+2*j}")
            A(f"v_and_b32 v13, 0xffff0000, v{BB+2*j}")
            A(f"v_lshlrev_b32 v14, 16, v{BB+2*j+1}")
            A(f"v_and_b32 v15, 0xffff0000, v{BB+2*j+1}")
            for m in range(2):
                d = accb(j, m); x = XB + (j * 2 + m) * 2
                A(f"v_lshlrev_b32 v{d}, 16, v{x}")
                A(f"v_and_b32 v{d+1}, 0xffff0000, v{x}")
                A(f"v_lshlrev_b32 v{d+2}, 16, v{x+1}")
                A(f"v_and_b32 v{d+3}, 0xffff0000, v{x+1}")
                A(f"v_pk_add_f32 {vr(d,2)}, {vr(d,2)}, v[12:13]")
                A(f"v_pk_add_f32 {vr(d+2,2)}, {vr(d+2,2)}, v[14:15]")
    P = dict(MS=2, NT=NT, U=U, nsteps=144, RA=RA, distA=distA, BKS=BKS, S=S, DW=DW, RB=RB, acc=acc,
             afrag=lambda slot, m: slot * 8 + 4 * m, bfrag=lambda par, j: BF0 + (par * NT + j) * 4,
             swap=lambda j: False, aload=aload, dma=dma, dsread=dsread, label="L_g2", scnt="s36",
             pro_mid=pro_mid, lg_every=cfg.get("lg_every", 2), no_mfma=cfg.get("no_mfma"), no_ds=cfg.get("no_ds"))
    mainloop(A, P)
    make_srd(A, 44, "s42", "s43", 4 * MB)
    A("v_add_u32 v2, v2, v3")
    A("s_nop 7")
    for m in range(2):
        for pp in range(NT // 2):
            t = 16 + (m * (NT // 2) + pp) * 4
            a, b = accb(2 * pp, m), accb(2 * pp + 1, m)
            A(f"v_cvt_pk_bf16_f32 v{t}, v{a}, v{a+1}")
            A(f"v_cvt_pk_bf16_f32 v{t+1}, v{a+2}, v{a+3}")
            A(f"v_cvt_pk_bf16_f32 v{t+2}, v{b}, v{b+1}")
            A(f"v_cvt_pk_bf16_f32 v{t+3}, v{b+2}, v{b+3}")
            A("s_nop 1")
            A(f"v_permlane32_swap_b32 v{t}, v{t+2}")
            A(f"v_permlane32_swap_b32 v{t+1}, v{t+3}")
            A("s_nop 1")
            A(f"v_permlane16_swap_b32 v{t}, v{t+2}")
            A(f"v_permlane16_swap_b32 v{t+1}, v{t+3}")
            A("s_nop 1")
            A(f"buffer_store_dwordx4 {vr(t,4)}, v2, s[44:47], {'s31' if m==0 else 's32'} offen offset:{64*pp}")
    stamp(A, 3)
    stamp_out(A, 5, 3)
    A.label("L_g2_end")
    A("s_endpgm")
    nacc = BF0 + RB * NT * 4
    return name, kernel_desc(name, 128 + nacc, 100, 128), (256, 256, S * STG)

try:
    HEADER = open("parallel_sum__sliding_block__dense_activation_gelu__prompt.s.ref").read().split("; Override")[0]
except Exception:
    HEADER = ""

def build(cfg, only=None):
    A = Asm()
    ks = []
    ks.append(gen_ln(A))
    ks.append(gen_gemm1(A, cfg["g1"]))
    ks.append(gen_attn(A))
    ks.append(gen_gemm2(A, cfg["g2"]))
    out = HEADER
    for n, d, (g, b, l) in ks:
        if only is None or n in only:
            out += f"; @launch kernel={n} grid=({g},1,1) block=({b},1,1) lds={l}\n"
    out += '.amdgcn_target "amdgcn-amd-amdhsa--gfx950"\n.text\n'
    out += A.text()
    out += '.section .rodata,"a"\n'
    for n, d, _ in ks:
        out += d
    return out

DEFAULT = dict(
    g1=dict(U=8, RA=8, distA=4, S=8, DW=5, phase=8),
    g2=dict(U=16, RA=16, distA=10, S=8, DW=6, RB=2, phase=8),
)

if __name__ == "__main__":
    out = sys.argv[1] if len(sys.argv) > 1 else "parallel_sum__sliding_block__dense_activation_gelu__prompt.s"
    open(out, "w").write(build(DEFAULT))
    print("wrote", out)
```

```python
from asmlib import *

def isvm(s):
    return s.startswith("buffer_") or s.startswith("global_")

class Pipe:
    def __init__(self, A):
        self.A = A
        self.vlog = []
        self.llog = []
        self.lg_every = 4
        self.vdone = -1
        self.ldone = -1
    def emit(self, lst, tag):
        for s in lst:
            self.A(s)
            if isvm(s):
                self.vlog.append(tag)
            elif s.startswith("ds_"):
                self.llog.append(tag)
    def vcount(self, tags):
        last = -1
        for k in range(len(self.vlog) - 1, -1, -1):
            if self.vlog[k] in tags:
                last = k; break
        assert all(t in self.vlog for t in tags), (tags,)
        return len(self.vlog) - 1 - last
    def vwait(self, tags):
        n = self.vcount(tags)
        self.A(f"s_waitcnt vmcnt({min(n, 63)})")
    def forget(self, tag):
        self.vlog = [t for t in self.vlog if t != tag]
    def lcount(self, tag):
        for k in range(len(self.llog) - 1, -1, -1):
            if self.llog[k] == tag:
                return len(self.llog) - 1 - k
        raise AssertionError(tag)
    def step(self, i):
        A = self.A
        tags, bar = self.needs(i)
        if tags:
            self.vwait(tags)
        if bar:
            A("s_barrier")
        tiles = self.tiles(i)
        MS = self.MS
        fill = []
        for lst, tag in self.loads(i):
            cur = []
            for s in lst:
                cur.append(s)
                if isvm(s):
                    fill.append((cur, tag)); cur = []
            if cur:
                fill.append((cur, tag))
        nm = len(tiles) * MS
        cand = [k for k in range(nm) if (k % MS) != MS - 1 or MS == 1]
        pos = {}
        for f in range(len(fill)):
            k = cand[(f * len(cand)) // len(fill)]
            pos.setdefault(k, []).append(fill[f])
        for jj, j in enumerate(tiles):
            if jj % self.lg_every == 0:
                jl = tiles[min(len(tiles) - 1, jj + self.lg_every - 1)]
                A(f"s_waitcnt lgkmcnt({min(15, self.lcount(self.rneed(i, jl)))})")
            for m in range(MS):
                k = jj * MS + m
                s = self.mfma(i, j, m)
                if s:
                    A(s)
                for lst, tag in pos.get(k, []):
                    self.emit(lst, tag)
            for lst, tag in self.reads(i, j):
                self.emit(lst, tag)
    def run(self, i0, i1):
        for i in range(i0, i1):
            self.step(i)
    def loop(self, i0, i1, U, label, scnt, align=True):
        A = self.A
        n = (i1 - i0) // U
        assert n * U == i1 - i0
        if n == 1:
            return self.run(i0, i1)
        A(f"s_mov_b32 {scnt}, {n}")
        if align:
            A(".p2align 6")
        A.label(label)
        start = len(A.lines)
        self.run(i0, i0 + U)
        body = A.lines[start:]
        A(f"s_sub_u32 {scnt}, {scnt}, 1")
        A(f"s_cmp_lg_u32 {scnt}, 0")
        A(f"s_cbranch_scc1 {label}")
        save = A.lines
        for it in range(1, n):
            A.lines = []
            self.run(i0 + it * U, i0 + (it + 1) * U)
            if A.lines != body:
                for a, b in zip(A.lines, body):
                    if a != b:
                        raise AssertionError(f"loop not periodic at iter {it}: {a!r} vs {b!r}")
                raise AssertionError("loop length differs")
        A.lines = save
```

```python
import sys, math
from asmlib import *
from pipe import *

MB = 1 << 20
WS_XN = 0
WS_KV = 4 * MB
WS_AH = 16 * MB
AH_G = 144 * 2048
WS_FLAG = 39 * MB
WS_PART = 40 * MB
WS_BYTES = 256 * MB
KA_X, KA_WQKV, KA_WO, KA_BX, KA_W1, KA_B1, KA_W2, KA_B2, KA_OUT, KA_DBG, KA_WS = [8 * i for i in range(11)]
NEG = -1.0e30
WS_STAMP = 200 * MB
STAMP = False
def stamp(A, i):
    if STAMP:
        A(f"s_memtime s[{64+4*i}:{65+4*i}]")
        A(f"s_memrealtime s[{66+4*i}:{67+4*i}]")
        A("s_waitcnt lgkmcnt(0)")
def stamp_out(A, n, kidx):
    if not STAMP:
        return
    A("s_waitcnt vmcnt(0)")
    stamp(A, n - 1)
    make_srd(A, 92, "s22", "s23", WS_BYTES)
    A("s_lshl_b32 s96, s2, 3")
    A("s_add_u32 s96, s96, s24")
    A("s_lshl_b32 s96, s96, 7")
    A(f"s_add_u32 s96, s96, {WS_STAMP + kidx * MB}")
    A("v_mov_b32 v0, 0")
    for i in range(2 * n):
        A(f"v_mov_b32 v1, s{64+2*i}")
        A(f"buffer_store_dword v1, v0, s[92:95], s96 offen offset:{4*i}")

def poll_check(A, P, vreg, vzero, srd, soff, tag, lab):
    P.vwait({tag})
    A(f"v_readfirstlane_b32 s33, {vreg}")
    A("s_mov_b32 s34, 0x40000")
    A("s_cmp_lg_u32 s33, 0")
    A(f"s_cbranch_scc1 {lab}_ok")
    A.label(f"{lab}_spin")
    A("s_sleep 1")
    A(f"buffer_load_dword {vreg}, {vzero}, {srd}, {soff} offen sc1")
    A("s_waitcnt vmcnt(0)")
    A(f"v_readfirstlane_b32 s33, {vreg}")
    A("s_sub_u32 s34, s34, 1")
    A("s_cmp_eq_u32 s34, 0")
    A(f"s_cbranch_scc1 {lab}_ok")
    A("s_cmp_eq_u32 s33, 0")
    A(f"s_cbranch_scc1 {lab}_spin")
    A.label(f"{lab}_ok")

def gen_ln(A, cfg):
    name = "ln_kernel"
    kernel_begin(A, name)
    PR = cfg.get("PR", 0)
    sfl = cfg.get("sfl", "sc1")
    A("s_cmp_ge_u32 s2, 256")
    A("s_cbranch_scc1 L_ln_end")
    stamp(A, 0)
    A(f"s_load_dwordx4 s[4:7], s[0:1], {KA_X}")
    A(f"s_load_dwordx2 s[22:23], s[0:1], {KA_WS}")
    A(f"s_load_dwordx2 s[20:21], s[0:1], {KA_W1}")
    A("v_lshrrev_b32 v1, 5, v0")
    A("v_and_b32 v2, 31, v0")
    A("v_lshlrev_b32 v3, 11, v1")
    A("v_lshl_add_u32 v3, v2, 4, v3")
    A("v_lshlrev_b32 v6, 4, v0")
    A("s_lshl_b32 s3, s2, 14")
    if STAMP:
        A("v_lshrrev_b32 v4, 6, v0"); A("s_nop 0"); A("v_readfirstlane_b32 s24, v4")
    A("s_waitcnt lgkmcnt(0)")
    make_srd(A, 8, "s4", "s5", 4 * MB)
    for i in range(4):
        A(f"buffer_load_dwordx4 v[{8+4*i}:{11+4*i}], v3, s[8:11], s3 offen offset:{512*i} {cfg.get('xfl','nt')}")
    npf = 0
    if PR:
        make_srd(A, 28, "s6", "s7", PR * 6144)
        make_srd(A, 32, "s20", "s21", PR * 7168)
        A("s_lshl_b32 s18, s2, 12")
        for q in range((PR * 7168 + MB - 1) // MB):
            if q * MB < PR * 6144:
                A(f"buffer_load_dwordx4 v[64:67], v6, s[28:31], s18 offen"); npf += 1
            A(f"buffer_load_dwordx4 v[64:67], v6, s[32:35], s18 offen"); npf += 1
            A(f"s_add_u32 s18, s18, {MB}")
    make_srd(A, 12, "s22", "s23", WS_BYTES)
    A("v_lshlrev_b32 v7, 2, v0")
    A("v_mov_b32 v5, 0")
    A("s_lshl_b32 s19, s2, 10")
    A(f"s_add_u32 s19, s19, {WS_FLAG}")
    A(f"buffer_store_dword v5, v7, s[12:15], s19 offen {sfl}"); npf += 1
    A("v_lshrrev_b32 v5, 2, v2")
    A("v_and_b32 v62, 1, v2")
    A("v_and_b32 v7, 3, v5")
    A("v_lshl_add_u32 v7, v7, 1, v62")
    A("v_xor_b32 v7, v7, v1")
    A("v_lshlrev_b32 v4, 9, v5")
    A("v_lshl_add_u32 v4, v62, 8, v4")
    A("v_lshl_add_u32 v4, v7, 4, v4")
    A("v_bfe_u32 v62, v2, 1, 1")
    A("v_lshl_add_u32 v4, v62, 3, v4")
    A("v_and_b32 v7, 3, v1")
    A("v_bfe_u32 v62, v0, 4, 1")
    A("v_lshl_add_u32 v7, v7, 1, v62")
    A("v_and_b32 v62, 7, v0")
    A("v_xor_b32 v7, v7, v62")
    A("v_lshlrev_b32 v5, 12, v1")
    A("v_bfe_u32 v62, v0, 3, 2")
    A("v_lshl_add_u32 v5, v62, 8, v5")
    A("v_lshl_add_u32 v5, v7, 4, v5")
    A("s_lshr_b32 s16, s2, 3")
    A("s_lshl_b32 s16, s16, 17")
    A("s_bfe_u32 s17, s2, 0x20001")
    A("s_lshl_b32 s17, s17, 10")
    A("s_add_u32 s16, s16, s17")
    A("s_and_b32 s17, s2, 1")
    A("s_lshl_b32 s17, s17, 7")
    A("s_add_u32 s16, s16, s17")
    F = 24
    for i in range(4):
        A(f"s_waitcnt vmcnt({3-i+npf})")
        for d in range(4):
            s = 8 + 4 * i + d
            A(f"v_lshlrev_b32 v{F+2*(4*i+d)}, 16, v{s}")
            A(f"v_and_b32 v{F+2*(4*i+d)+1}, 0xffff0000, v{s}")
    stamp(A, 1)
    A(f"v_pk_add_f32 v[56:57], v[{F}:{F+1}], v[{F+2}:{F+3}]")
    A(f"v_pk_add_f32 v[58:59], v[{F+4}:{F+5}], v[{F+6}:{F+7}]")
    for p in range(4, 16, 2):
        A(f"v_pk_add_f32 v[56:57], v[56:57], v[{F+2*p}:{F+2*p+1}]")
        A(f"v_pk_add_f32 v[58:59], v[58:59], v[{F+2*p+2}:{F+2*p+3}]")
    A("v_pk_add_f32 v[56:57], v[56:57], v[58:59]")
    A("v_add_f32 v56, v56, v57")
    def red32(r, t):
        for sh in (8, 4, 2, 1):
            A("s_nop 1")
            A(f"v_add_f32_dpp v{r}, v{r}, v{r} row_ror:{sh} row_mask:0xf bank_mask:0xf")
        A(f"v_mov_b32 v{t}, v{r}")
        A("s_nop 1")
        A(f"v_permlane16_swap_b32 v{r}, v{t}")
        A("s_nop 1")
        A(f"v_add_f32 v{r}, v{r}, v{t}")
    red32(56, 57)
    A(f"v_mul_f32 v56, {fhex(1.0/1024)}, v56")
    for p in range(16):
        A(f"v_pk_add_f32 v[{F+2*p}:{F+2*p+1}], v[{F+2*p}:{F+2*p+1}], v[56:57] op_sel_hi:[1,0] neg_lo:[0,1] neg_hi:[0,1]")
    A(f"v_pk_mul_f32 v[58:59], v[{F}:{F+1}], v[{F}:{F+1}]")
    A(f"v_pk_mul_f32 v[60:61], v[{F+2}:{F+3}], v[{F+2}:{F+3}]")
    for p in range(2, 16, 2):
        A(f"v_pk_fma_f32 v[58:59], v[{F+2*p}:{F+2*p+1}], v[{F+2*p}:{F+2*p+1}], v[58:59]")
        A(f"v_pk_fma_f32 v[60:61], v[{F+2*p+2}:{F+2*p+3}], v[{F+2*p+2}:{F+2*p+3}], v[60:61]")
    A("v_pk_add_f32 v[58:59], v[58:59], v[60:61]")
    A("v_add_f32 v58, v58, v59")
    red32(58, 59)
    A(f"v_mov_b32 v59, {fhex(1e-5)}")
    A(f"v_fmac_f32 v59, {fhex(1.0/1024)}, v58")
    A("v_rsq_f32 v58, v59")
    A("s_nop 0")
    for p in range(16):
        A(f"v_pk_mul_f32 v[{F+2*p}:{F+2*p+1}], v[{F+2*p}:{F+2*p+1}], v[58:59] op_sel_hi:[1,0]")
    for p in range(16):
        A(f"v_cvt_pk_bf16_f32 v{8+p}, v{F+2*p}, v{F+2*p+1}")
    for i in range(4):
        A(f"ds_write_b64 v4, v[{8+4*i}:{9+4*i}] offset:{4096*i}")
        A(f"ds_write_b64 v4, v[{10+4*i}:{11+4*i}] offset:{4096*i+128}")
    A("s_waitcnt lgkmcnt(0)")
    A("s_barrier")
    stamp(A, 2)
    for i in range(4):
        A(f"ds_read_b128 v[{24+4*i}:{27+4*i}], v6 offset:{4096*i}")
    for i in range(4):
        A(f"s_waitcnt lgkmcnt({3-i})")
        A(f"buffer_store_dwordx4 v[{24+4*i}:{27+4*i}], v5, s[12:15], s16 offen {sfl}")
        if i < 3:
            A("s_add_u32 s16, s16, 32768")
    stamp(A, 3)
    stamp_out(A, 5, 0)
    A.label("L_ln_end")
    A("s_endpgm")
    return name, kernel_desc(name, 72, 100, 72), (256, 256, 16384)

def gen_g1(A, cfg):
    name = "g1_kernel"
    kernel_begin(A, name)
    distA, DW = cfg["distA"], cfg["DW"]
    U = RA = S = 4
    assert distA <= 3 and DW <= 3
    PR = cfg.get("PR", 256)
    hfl = cfg.get("hfl", "sc1")
    STG = 16384
    KVB = S * STG
    ACC0 = 48
    accb = lambda j, m: ACC0 + (j * 4 + m) * 4
    acc = lambda j, m: vr(accb(j, m), 4)
    BF0 = 16 * RA
    A("s_cmp_ge_u32 s2, 256")
    A("s_cbranch_scc1 L_g1_end")
    stamp(A, 0)
    A(f"s_load_dwordx4 s[16:19], s[0:1], {KA_WQKV}")
    A(f"s_load_dwordx4 s[56:59], s[0:1], {KA_W1}")
    A(f"s_load_dwordx2 s[60:61], s[0:1], {KA_W2}")
    A(f"s_load_dwordx2 s[22:23], s[0:1], {KA_WS}")
    A("v_lshrrev_b32 v1, 6, v0")
    A("v_and_b32 v0, 63, v0")
    A("s_nop 0")
    A("v_readfirstlane_b32 s24, v1")
    A("s_and_b32 s25, s2, 1")
    A("s_lshl_b32 s25, s25, 2")
    A("s_bfe_u32 s26, s2, 0x20003")
    A("s_add_u32 s25, s25, s26")
    A("s_bfe_u32 s26, s2, 0x20001")
    A("s_lshl_b32 s26, s26, 3")
    A("s_lshr_b32 s27, s2, 5")
    A("s_add_u32 s26, s26, s27")
    A("s_and_b32 s27, s26, 1")
    A("v_lshlrev_b32 v1, 4, v0")
    if cfg.get("phase", 4) == 4:
        A("s_xor_b32 s53, s25, s26")
        A("s_and_b32 s53, s53, 3")
    else:
        A("s_mov_b32 s53, 0")
    A("s_mul_i32 s32, s26, 224")
    A("s_lshl_b32 s51, s24, 12")
    A("s_cmp_ge_u32 s24, 2")
    A("s_cbranch_scc1 L_g1_w1setup")
    for p in range(3):
        A(f"v_add_u32 v30, {64*p}, v0")
        A("v_mul_u32_u24 v31, 43691, v30")
        A("v_lshrrev_b32 v31, 19, v31")
        A("v_mul_u32_u24 v32, 12, v31")
        A("v_sub_u32 v32, v30, v32")
        A("v_lshrrev_b32 v33, 2, v32")
        A("v_and_b32 v32, 3, v32")
        A("v_bfe_u32 v34, v31, 2, 1")
        A("v_lshlrev_b32 v34, 1, v34")
        A("v_xor_b32 v32, v32, v34")
        A("v_mul_u32_u24 v31, 6144, v31")
        A("v_lshl_add_u32 v31, v33, 11, v31")
        A("v_lshl_add_u32 v31, v32, 4, v31")
        A(f"v_subrev_u32 v{12+p}, {1024*p}, v31")
    A("v_mov_b32 v15, v1")
    A(f"s_mov_b32 s50, {32*6144}")
    A(f"s_mul_i32 s35, s24, {16*6144}")
    A("s_lshl_b32 s36, s26, 6")
    A("s_add_u32 s35, s35, s36")
    A("s_waitcnt lgkmcnt(0)")
    make_srd(A, 8, "s16", "s17", 1024 * 6144)
    A("s_cmp_eq_u32 s24, 0")
    A("s_cselect_b32 s12, s18, s60")
    A("s_cselect_b32 s13, s19, s61")
    A(f"s_mov_b32 s37, {3584*2048}")
    A(f"s_cselect_b32 s37, {1024*2048}, s37")
    A(f"s_mov_b32 s38, 0")
    if not cfg.get("pfl", False):
        A("s_mov_b32 s37, 0")
    make_srd(A, 12, "s12", "s13", "s37")
    A("s_branch L_g1_pfsetup")
    A.label("L_g1_w1setup")
    A("s_sub_u32 s35, s24, 2")
    A("s_lshl_b32 s35, s35, 8")
    for p in range(4):
        A(f"v_add_u32 v30, {64*p}, v0")
        A("v_add_u32 v30, s35, v30")
        A("v_mul_u32_u24 v31, 4682, v30")
        A("v_lshrrev_b32 v31, 16, v31")
        A("v_mul_u32_u24 v32, 14, v31")
        A("v_sub_u32 v32, v30, v32")
        A("v_lshl_add_u32 v32, s27, 1, v32")
        A("v_subrev_u32 v33, 14, v32")
        A("v_cmp_le_u32 vcc, 14, v32")
        A("s_nop 1")
        A("v_cndmask_b32 v32, v32, v33, vcc")
        A("v_mul_u32_u24 v33, 7168, v31")
        A("v_lshl_add_u32 v33, v32, 4, v33")
        A(f"v_subrev_u32 v{12+p}, {1024*p}, v33")
    A(f"s_mov_b32 s50, {32*7168}")
    A("s_mov_b32 s35, s32")
    A("s_waitcnt lgkmcnt(0)")
    make_srd(A, 8, "s56", "s57", 1024 * 7168)
    make_srd(A, 12, "s56", "s57", 1024 * 7168)
    A(f"s_mov_b32 s38, {PR*7168 - 3072}")
    A("s_cmp_eq_u32 s24, 2")
    A("s_cbranch_scc1 L_g1_w2setup")
    A("v_mov_b32 v15, v1")
    A("s_mov_b32 s14, 0")
    A.label("L_g1_pfsetup")
    A("s_lshl_b32 s36, s2, 10")
    A("s_add_u32 s38, s38, s36")
    for u in range(4):
        A(f"s_add_u32 s{62+0}, s38, {u*262144}") if False else None
    for u in range(4):
        A(f"s_add_u32 s{96 if False else 0}, s38, 0") if False else None
    SP = [48, 49, 54, 55]
    for u in range(4):
        A(f"s_add_u32 s{SP[u]}, s38, {u*262144}")
    A(f"s_mov_b32 s39, {MB}")
    for u in range(4):
        A(f"s_xor_b32 s36, s53, {u}")
        A("s_mul_i32 s36, s36, s50")
        A(f"s_add_u32 s{44+u}, s36, s35")
    A("s_lshl_b32 s50, s50, 2")
    A("s_branch L_g1_setupdone")
    A.label("L_g1_w2setup")
    for u in range(4):
        A(f"s_xor_b32 s36, s53, {u}")
        A("s_mul_i32 s36, s36, s50")
        A(f"s_add_u32 s{44+u}, s36, s35")
        A(f"s_mov_b32 s{SP[u]}, s{44+u}")
    A("s_lshl_b32 s50, s50, 2")
    A("s_mov_b32 s39, s50")
    A.label("L_g1_setupdone")
    A("s_lshl_b32 s28, s25, 2")
    A("s_add_u32 s28, s28, s24")
    A("s_lshl_b32 s28, s28, 17")
    A("s_add_u32 s4, s22, s28")
    A("s_addc_u32 s5, s23, 0")
    make_srd(A, 4, "s4", "s5", 131072)
    for u in range(4):
        A(f"s_xor_b32 s36, s53, {u}")
        A(f"s_lshl_b32 s{40+u}, s36, 12")

    P = Pipe(A)
    P.MS = 4
    P.lg_every = cfg.get("lg_every", 5)
    P.tiles = lambda i: list(range(13))
    def mfma(i, j, m):
        a, b = ar(BF0 + 4 * j, 4), ar((i % RA) * 16 + 4 * m, 4)
        if j in (4, 5):
            a, b = b, a
        return f"v_mfma_f32_16x16x32_bf16 {acc(j,m)}, {a}, {b}, {acc(j,m)}"
    P.mfma = mfma
    def aload(t):
        u = t % 4
        l = [f"buffer_load_dwordx4 {ar(u*16+4*m,4)}, v1, s[4:7], s{40+u} offen offset:{1024*m}" for m in range(4)]
        l.append(f"s_add_u32 s{40+u}, s{40+u}, 16384")
        return l
    def dma(t):
        u = t % 4
        l = [f"s_add_u32 m0, s51, {u*STG}", f"s_add_u32 s{SP[(u+3)%4]}, s{SP[(u+3)%4]}, s39" if t > 0 else "s_nop 0"]
        l += [f"buffer_load_dwordx4 v{12+p}, s[8:11], s{44+u} offen offset:{1024*p} lds" for p in range(3)]
        l.append(f"s_add_u32 s{44+u}, s{44+u}, s50")
        l.append(f"buffer_load_dwordx4 v15, s[12:15], s{SP[u]} offen offset:3072 lds")
        return l
    spf = cfg.get("spf", True)
    if spf:
        A("s_lshl_b32 s36, s2, 2")
        A("s_add_u32 s36, s36, s24")
        A("s_mul_i32 s37, s36, 896")
        A("s_add_u32 s37, s37, 60")
        A("s_add_u32 s62, s60, s37")
        A("s_addc_u32 s63, s61, 0")
        A("s_lshl_b32 s37, s36, 8")
        A("s_add_u32 s37, s37, 60")
        A("s_add_u32 s96, s18, s37")
        A("s_addc_u32 s97, s19, 0")
    def sprefetch(u):
        l = []
        for q in ((0, 1), (2, 3), (4, 5), (6,))[u]:
            l.append([f"s_load_dwordx2 s[98:99], s[62:63], {128*q}"])
        if u == 3:
            l.append(["s_load_dwordx2 s[98:99], s[96:97], 0"])
            l.append(["s_load_dwordx2 s[98:99], s[96:97], 128", "s_add_u32 s62, s62, 917504", "s_addc_u32 s63, s63, 0"])
            l.append(["s_add_u32 s96, s96, 262144", "s_addc_u32 s97, s97, 0"])
        return l
    def loads(i):
        r = []
        sp = sprefetch(i % 4) if (spf and i >= 0) else []
        if sp: r.append((sp.pop(0), "sp"))
        if i + DW >= 0:
            r.append((dma(i + DW), ("W", i + DW)))
        if sp: r.append((sp.pop(0), "sp"))
        if i + distA >= 0:
            r.append((aload(i + distA), ("A", i + distA)))
        for l in sp: r.append((l, "sp"))
        return r
    P.loads = loads
    P.needs = lambda i: ({("A", i), ("W", i + 1)}, True)
    def dsread(t, j):
        off = (t % S) * STG
        b = BF0 + 4 * j
        if j < 6:
            base = 6 + (j & 1)
            o = off + (j >> 1) * 64
            return [f"ds_read_b64_tr_b16 {ar(b,2)}, v{base} offset:{o}",
                    f"ds_read_b64_tr_b16 {ar(b+2,2)}, v{base} offset:{o+4096}"]
        o = off + (j - 6) * 32
        return [f"ds_read_b64_tr_b16 {ar(b,2)}, v8 offset:{o}",
                f"ds_read_b64_tr_b16 {ar(b+2,2)}, v8 offset:{o+3584}"]
    P.reads = lambda i, j: [(dsread(i + 1, j), (i + 1, j))]
    P.rneed = lambda i, j: (i, j)
    first = True
    for i in range(-max(distA, DW), 0):
        for lst, tag in loads(i):
            P.emit(lst, tag)
            if first:
                first = False
                make_srd(A, 28, "s58", "s59", 7168)
                A("v_lshrrev_b32 v2, 4, v0")
                A("v_lshlrev_b32 v2, 3, v2")
                A("s_lshl_b32 s33, s27, 5")
                A("s_add_u32 s33, s33, s32")
                A("s_cmp_eq_u32 s27, 0")
                A("s_cselect_b32 s34, 192, 0")
                A("s_add_u32 s34, s34, s32")
                P.emit([f"buffer_load_dwordx2 v[{16+2*b}:{17+2*b}], v2, s[28:31], s33 offen offset:{32*b}" for b in range(6)]
                       + ["buffer_load_dwordx2 v[28:29], v2, s[28:31], s34 offen"], "bias")
    A("v_lshrrev_b32 v2, 2, v0")
    A("v_and_b32 v3, 3, v0")
    A("v_lshlrev_b32 v3, 3, v3")
    A("v_mul_u32_u24 v4, 192, v2")
    A("v_add_u32 v4, v4, v3")
    A("v_bfe_u32 v5, v0, 4, 1")
    A("v_lshl_add_u32 v6, v5, 5, v4")
    A("v_xor_b32 v5, 1, v5")
    A("v_lshl_add_u32 v7, v5, 5, v4")
    A("v_mul_u32_u24 v8, 224, v2")
    A("v_add_u32 v8, v8, v3")
    A("v_add_u32 v8, 8192, v8")
    for j in range(6):
        for m in range(4):
            for r in (0, 2):
                A(f"v_pk_mov_b32 {vr(accb(j,m)+r,2)}, 0, 0") if False else None
            for r in range(4):
                A(f"v_mov_b32 v{accb(j,m)+r}, 0")
    P.vwait({("W", 0), "bias"})
    P.forget("bias")
    A("s_barrier")
    for j in range(13):
        P.emit(dsread(0, j), (0, j))
    for b in range(7):
        d = accb(6 + b, 0)
        A(f"v_lshlrev_b32 v{d}, 16, v{16+2*b}")
        A(f"v_and_b32 v{d+1}, 0xffff0000, v{16+2*b}")
        A(f"v_lshlrev_b32 v{d+2}, 16, v{17+2*b}")
        A(f"v_and_b32 v{d+3}, 0xffff0000, v{17+2*b}")
        for m in range(1, 4):
            for r in range(4):
                A(f"v_mov_b32 v{accb(6+b,m)+r}, v{d+r}")
    stamp(A, 1)
    P.loop(0, 32, U, "L_g1_loop", "s52")
    stamp(A, 2)
    make_srd(A, 28, "s22", "s23", WS_BYTES)
    A("s_lshl_b32 s32, s26, 3")
    A("s_add_u32 s32, s32, s25")
    A("s_lshl_b32 s35, s32, 7")
    A(f"s_add_u32 s35, s35, {WS_FLAG}")
    A("s_sub_u32 s36, s35, 128")
    A("s_lshl_b32 s32, s32, 15")
    A("s_add_u32 s32, s32, s51")
    A(f"s_add_u32 s32, s32, {WS_KV}")
    A("s_add_u32 s33, s32, 16384")
    A("s_sub_u32 s37, s32, 32768")
    A("s_cmp_eq_u32 s25, 0")
    A("s_cselect_b32 s37, 0x40000000, s37")
    A("s_add_u32 s38, s37, 16384")
    A(f"v_add_u32 v9, s51, v1")
    A(f"v_add_u32 v9, {KVB}, v9")
    qs = (32 ** -0.5) * math.log2(math.e)
    A(f"v_mov_b32 v2, {fhex(qs)}")
    A("v_mov_b32 v10, 0")
    A("v_mov_b32 v11, 1")
    T = 16
    nq = [0]
    def tq():
        b = T + 4 * (nq[0] % 8); nq[0] += 1
        return b
    for m in range(4):
        t = tq()
        for h in range(2):
            a = accb(2 + h, m)
            A(f"v_cvt_pk_bf16_f32 v{t+2*h}, v{a}, v{a+1}")
            A(f"v_cvt_pk_bf16_f32 v{t+2*h+1}, v{a+2}, v{a+3}")
        P.emit([f"buffer_store_dwordx4 {vr(t,4)}, v1, s[28:31], s32 offen offset:{1024*m} sc1"], "kv")
        A(f"ds_write_b128 v9, {vr(t,4)} offset:{16384+1024*m}")
    for p in range(2):
        for tt in range(2):
            t = tq()
            for h in range(2):
                a = accb(4 + tt, 2 * p + h)
                A(f"v_cvt_pk_bf16_f32 v{t+2*h}, v{a}, v{a+1}")
                A(f"v_cvt_pk_bf16_f32 v{t+2*h+1}, v{a+2}, v{a+3}")
            P.emit([f"buffer_store_dwordx4 {vr(t,4)}, v1, s[28:31], s33 offen offset:{2048*p+1024*tt} sc1"], "kv")
            A(f"ds_write_b128 v9, {vr(t,4)} offset:{32768+16384+2048*p+1024*tt}")
    for m in range(4):
        d = accb(0, m)
        for h in range(2):
            a = accb(h, m)
            A(f"v_pk_mul_f32 {vr(a,2)}, {vr(a,2)}, v[2:3] op_sel_hi:[1,0]")
            A(f"v_pk_mul_f32 {vr(a+2,2)}, {vr(a+2,2)}, v[2:3] op_sel_hi:[1,0]")
            A(f"v_cvt_pk_bf16_f32 v{d+2*h}, v{a}, v{a+1}")
            A(f"v_cvt_pk_bf16_f32 v{d+2*h+1}, v{a+2}, v{a+3}")
    A("s_lshl_b32 s32, s25, 3")
    A("s_lshl_b32 s33, s24, 1")
    A("s_add_u32 s32, s32, s33")
    A(f"s_mul_i32 s32, s32, {AH_G}")
    A(f"s_add_u32 s32, s32, {WS_AH}")
    A("s_lshl_b32 s33, s26, 11")
    A("s_add_u32 s44, s32, s33")
    A(f"s_add_u32 s44, s44, {112*2048}")
    A("s_mul_i32 s33, s26, 7")
    A("s_add_u32 s33, s33, s27")
    A("s_lshr_b32 s33, s33, 1")
    A("s_lshl_b32 s33, s33, 11")
    A("s_add_u32 s40, s32, s33")
    A("s_mul_i32 s33, s27, 8184")
    A("s_sub_u32 s41, s40, s33")
    A("s_add_u32 s41, s41, 6144")
    c1 = -2.0 * math.sqrt(2.0 / math.pi) * math.log2(math.e)
    c2 = c1 * 0.044715
    A(f"v_mov_b32 v2, {fhex(c1)}")
    A(f"v_mov_b32 v4, {fhex(c2)}")
    E0 = 64
    def gelu_quad(a, e):
        for h in (0, 2):
            A(f"v_pk_mul_f32 {vr(e+h,2)}, {vr(a+h,2)}, {vr(a+h,2)}")
        for h in (0, 2):
            A(f"v_pk_fma_f32 {vr(e+h,2)}, {vr(e+h,2)}, v[4:5], v[2:3] op_sel_hi:[1,0,0]")
        for h in (0, 2):
            A(f"v_pk_mul_f32 {vr(e+h,2)}, {vr(e+h,2)}, {vr(a+h,2)}")
        for r in range(4):
            A(f"v_exp_f32 v{e+r}, v{e+r}")
        for h in (0, 2):
            A(f"v_pk_add_f32 {vr(e+h,2)}, {vr(e+h,2)}, 1.0 op_sel_hi:[1,0]")
        for r in range(4):
            A(f"v_rcp_f32 v{e+r}, v{e+r}")
        for h in (0, 2):
            A(f"v_pk_mul_f32 {vr(a+h,2)}, {vr(a+h,2)}, {vr(e+h,2)}")
    def gelu_m(m):
        for i in range(4):
            t = accb(6 + 2 * i, m)
            for h in range(2 if i < 3 else 1):
                a = accb(6 + 2 * i + h, m)
                gelu_quad(a, E0 + 4 * h)
                A(f"v_cvt_pk_bf16_f32 v{t+2*h}, v{a}, v{a+1}")
                A(f"v_cvt_pk_bf16_f32 v{t+2*h+1}, v{a+2}, v{a+3}")
    def h_stores():
        l = []
        for m in range(4):
            pre = []
            if m % 2 == 0:
                pre = [f"s_add_u32 s42, s40, {(m>>1)*AH_G}", "s_add_u32 s43, s42, 4096", f"s_add_u32 s45, s41, {(m>>1)*AH_G}"]
            for i in range(3):
                so, off = ("s42", i * 2048 + (m & 1) * 1024) if i < 2 else ("s43", (m & 1) * 1024)
                l.append(pre + [f"buffer_store_dwordx4 {acc(6+2*i,m)}, v1, s[28:31], {so} offen offset:{off} {hfl}"]); pre = []
            l.append([f"buffer_store_dwordx2 {vr(accb(12,m),2)}, v1, s[28:31], s45 offen offset:{(m&1)*1024} {hfl}"])
        return l
    early = cfg.get("early", False)
    hs_all = h_stores()
    _gelu_m = gelu_m
    def gelu_m(m):
        _gelu_m(m)
        if early:
            for l in hs_all[4*m:4*m+4]:
                P.emit(l, "h")
    gelu_m(0)
    P.vwait({"kv"})
    A("s_barrier")
    A("s_cmp_lg_u32 s24, 0")
    A("s_cbranch_scc1 L_g1_noflag")
    A("s_mov_b64 exec, 1")
    A("buffer_store_dword v11, v10, s[28:31], s35 offen sc1")
    A("s_mov_b64 exec, -1")
    A.label("L_g1_noflag")
    gelu_m(1)
    P.emit(["buffer_load_dword v12, v10, s[28:31], s36 offen sc1"], "poll")
    gelu_m(2)
    A("s_cmp_eq_u32 s25, 0")
    A("s_cbranch_scc1 L_g1_poll_ok")
    poll_check(A, P, "v12", "v10", "s[28:31]", "s36", "poll", "L_g1_poll")
    A(f"s_add_u32 m0, s51, {KVB}")
    A("s_nop 0")
    P.emit([f"buffer_load_dwordx4 v1, s[28:31], s37 offen offset:{1024*p} sc1 lds" for p in range(4)], "nk")
    A(f"s_add_u32 m0, s51, {KVB+32768}")
    A("s_nop 0")
    P.emit([f"buffer_load_dwordx4 v1, s[28:31], s38 offen offset:{1024*p} sc1 lds" for p in range(4)], "nv")
    gelu_m(3)
    stamp(A, 3)
    Q = 48
    SR, MU, MC, MX, TM = 64, 96, 100, 104, 108
    OA, LA, NM, CU, CC, SB, PB = 144, 176, 192, 208, 224, 64, 80
    KR, VR, ONES = 0, 16, 32
    A("v_and_b32 v2, 15, v0")
    A("v_lshrrev_b32 v3, 4, v0")
    A("v_lshlrev_b32 v3, 2, v3")
    A(f"v_mov_b32 v4, {fhex(NEG)}")
    for r in range(4):
        A(f"v_add_u32 v5, {r}, v3")
        A("v_cmp_lt_u32 vcc, v2, v5")
        A(f"v_mov_b32 v{MX+r}, v4")
        A("s_nop 0")
        A(f"v_cndmask_b32_e64 v{MU+r}, v4, 0, vcc")
        A(f"v_cndmask_b32_e64 v{MC+r}, 0, v4, vcc")
    A("v_mov_b32 v5, 0x3f803f80")
    for r in range(4):
        A(f"v_accvgpr_write_b32 a{ONES+r}, v5")
    A("s_cmp_eq_u32 s25, 0")
    A("s_cselect_b32 s46, s24, 3")
    A("v_add_u32 v6, 12288, v9")
    side = [] if early else h_stores()
    if cfg.get("pf", True):
        make_srd(A, 12, "s60", "s61", 3584 * 2048)
        make_srd(A, 4, "s18", "s19", 2 * MB)
        A("s_lshl_b32 s34, s2, 12")
        A("s_lshl_b32 s39, s24, 10")
        A("s_add_u32 s34, s34, s39")
        pfl = []
        for q in range(7):
            pfl.append([f"buffer_load_dwordx4 a[120:123], v1, s[12:15], s34 offen"] + ([f"buffer_load_dwordx4 a[124:127], v1, s[4:7], s34 offen"] if q < 2 else [])
                       + [f"s_add_u32 s34, s34, {MB}"])
    else:
        pfl = []
    if early and cfg.get("wb"):
        A("s_waitcnt vmcnt(0)")
    else:
        P.vwait({"nv"})
    A("s_waitcnt lgkmcnt(0)")
    A("s_barrier")
    if early and cfg.get("wb"):
        A("s_cmp_lg_u32 s24, 0")
        A("s_cbranch_scc1 L_g1_nowb")
        if cfg.get("wb") == 2:
            A("s_lshr_b32 s33, s2, 3")
            A("s_and_b32 s33, s33, 7")
            A("s_cmp_lg_u32 s33, 0")
            A("s_cbranch_scc1 L_g1_nowb")
        A("buffer_wbl2 sc1")
        A.label("L_g1_nowb")
    stamp(A, 4)
    kq = lambda i: ar(KR + 4 * i, 4)
    qq = lambda s_: vr(Q + 4 * s_, 4)
    for i in (3, 2, 1, 0):
        A(f"ds_read_b128 {kq(i)}, v9 offset:{16384+1024*i}")
    def sidework():
        if side:
            for l in side.pop(0):
                A(l)
    def phaseA(items, slots, pend, reload, first_wait, sprinkle=False):
        pend = list(pend)
        last_i = None
        for n, (i, s_, c) in enumerate(items):
            if i != last_i:
                A(f"s_waitcnt lgkmcnt({first_wait(i)})")
                last_i = i
            A(f"v_mfma_f32_16x16x32_bf16 {vr(SR+4*slots[n],4)}, {kq(i)}, {qq(s_)}, {c}")
            if reload and (n + 1 == len(items) or items[n + 1][0] != i):
                A(f"ds_read_b128 {kq(i)}, v6 offset:{1024*i}")
            if sprinkle:
                if side: sidework()
                else: A("s_nop 1")
            pend.append((slots[n], s_))
            if len(pend) > 3:
                sl, ps = pend.pop(0)
                A(f"v_max3_f32 v{MX+ps}, v{MX+ps}, v{SR+4*sl}, v{SR+4*sl+1}")
                A(f"v_max3_f32 v{MX+ps}, v{MX+ps}, v{SR+4*sl+2}, v{SR+4*sl+3}")
        return pend
    def drainA(pend):
        A("s_nop 7")
        for sl, ps in pend:
            A(f"v_max3_f32 v{MX+ps}, v{MX+ps}, v{SR+4*sl}, v{SR+4*sl+1}")
            A(f"v_max3_f32 v{MX+ps}, v{MX+ps}, v{SR+4*sl+2}, v{SR+4*sl+3}")
    g4 = [(i, s_, vr(MC, 4) if s_ == i else "0") for i in (3, 2, 1, 0) for s_ in range(i, 4)]
    pend = phaseA(g4, [0, 1, 2, 3, 4, 0, 1, 5, 6, 7], [], True, lambda i: 3, sprinkle=True)
    PEND = [(5, 1), (6, 2), (7, 3)]
    assert pend == PEND
    while side:
        sidework()
    A("s_mov_b32 s52, s46")
    A("s_cmp_eq_u32 s46, 0")
    A("s_cbranch_scc1 L_atA_exit")
    A.label("L_atA_loop")
    A("v_subrev_u32 v6, 4096, v6")
    full = [(i, s_, "0") for i in (3, 2, 1, 0) for s_ in range(4)]
    pend = phaseA(full, [n % 8 for n in range(16)], PEND, True, lambda i: 3)
    assert pend == PEND
    A("s_sub_u32 s52, s52, 1")
    A("s_cmp_lg_u32 s52, 0")
    A("s_cbranch_scc1 L_atA_loop")
    A("s_cmp_eq_u32 s25, 0")
    A("s_cbranch_scc1 L_atA_exit")
    g0 = [(i, s_, vr(MU, 4) if s_ == i else "0") for i in (3, 2, 1, 0) for s_ in range(0, i + 1)]
    pend0 = phaseA(g0, [n % 8 for n in range(10)], PEND, False, lambda i: i)
    drainA(pend0)
    A("s_branch L_atA_done")
    A.label("L_atA_exit")
    drainA(PEND)
    A.label("L_atA_done")
    A("s_waitcnt lgkmcnt(0)")
    for i in (3, 2, 1, 0):
        A(f"ds_read_b128 {kq(i)}, v9 offset:{16384+1024*i}")
    vq = lambda i: ar(VR + 4 * i, 4)
    for i in (2, 3, 0, 1):
        A(f"ds_read_b128 {vq(i)}, v9 offset:{32768+16384+1024*i}")
    A("v_add_u32 v6, 12288, v9")
    for sw in ("v_permlane32_swap_b32", "v_permlane16_swap_b32"):
        for s_ in range(4):
            A(f"v_mov_b32 v{TM+s_}, v{MX+s_}")
        for s_ in range(4):
            A(f"{sw} v{MX+s_}, v{TM+s_}")
        for s_ in range(4):
            A(f"v_max_f32 v{MX+s_}, v{MX+s_}, v{TM+s_}")
    for s_ in (2, 3, 0, 1):
        for r in range(4):
            A(f"v_sub_f32 v{NM+4*s_+r}, 0, v{MX+s_}")
            A(f"v_sub_f32 v{CC+4*s_+r}, v{MC+r}, v{MX+s_}")
    for s_ in range(4):
        for r in range(4):
            A(f"v_sub_f32 v{CU+4*s_+r}, v{MU+r}, v{MX+s_}")
    nm = lambda s_: vr(NM + 4 * s_, 4)
    def unit(p, s_, kind):
        c = []
        for h in range(2):
            i = 2 * p + h
            if kind == "full":
                c.append(nm(s_))
            elif kind == "g4":
                c.append(None if i > s_ else vr(CC + 4 * s_, 4) if i == s_ else nm(s_))
            else:
                c.append(None if i < s_ else vr(CU + 4 * s_, 4) if i == s_ else nm(s_))
        return dict(p=p, s=s_, c=c)
    seen = set()
    def qk_list(u, par):
        return [f"v_mfma_f32_16x16x32_bf16 {vr(SB+8*par+4*h,4)}, {kq(2*u['p']+h)}, {qq(u['s'])}, {u['c'][h]}" for h in range(2) if u['c'][h]]
    def pv_list(u, par, first=False):
        s_ = u['s']; p_ = vr(PB + 4 * par, 4); l = []
        for t in range(2):
            o = vr(OA + (s_ * 2 + t) * 4, 4)
            l.append(f"v_mfma_f32_16x16x32_bf16 {o}, {vq(2*u['p']+t)}, {p_}, {'0' if first else o}")
        o = vr(LA + 4 * s_, 4)
        l.append(f"v_mfma_f32_16x16x32_bf16 {o}, {ar(ONES,4)}, {p_}, {'0' if first else o}")
        return l
    def block(cur, par, qk, pv, after_qk=(), after_pv=(), pre=()):
        ex = [f"v_exp_f32 v{SB+8*par+4*h+r}, v{SB+8*par+4*h+r}" for h in range(2) if cur['c'][h] for r in range(4)]
        cv = []
        for h in range(2):
            d = PB + 4 * par + 2 * h; a = SB + 8 * par + 4 * h
            if cur['c'][h]:
                cv += [f"v_cvt_pk_bf16_f32 v{d}, v{a}, v{a+1}", f"v_cvt_pk_bf16_f32 v{d+1}, v{a+2}, v{a+3}"]
            else:
                cv += [f"v_mov_b32 v{d}, 0", f"v_mov_b32 v{d+1}, 0"]
        for l in pre:
            A(l)
        mf = [(m_, "q") for m_ in qk] + [(m_, "p") for m_ in pv]
        for k, (m_, kind) in enumerate(mf):
            A(m_)
            if kind == "q" and k == len(qk) - 1:
                for l in after_qk: A(l)
            if kind == "p" and k == len(mf) - 2:
                for l in after_pv: A(l)
            for _ in range(2):
                if ex: A(ex.pop(0))
        tail_exp = bool(ex) or not pv
        for e in ex: A(e)
        A("s_nop 0")
        for c_ in cv: A(c_)
    krl = lambda p: [f"ds_read_b128 {kq(2*p+1)}, v6 offset:{1024*(2*p+1)}", f"ds_read_b128 {kq(2*p)}, v6 offset:{1024*(2*p)}"]
    vrl = lambda p, adj: [f"ds_read_b128 {vq(2*p+t)}, v6 offset:{32768+adj+1024*(2*p+t)}" for t in range(2)]
    FIRSTU = unit(1, 0, "full")
    LASTU = unit(0, 3, "full")
    def group(units, entry_prev, nxt_first, reload, firsts=False, v_adj_entry=4096):
        n = len(units)
        assert n % 2 == 0
        for k, u in enumerate(units):
            par = k & 1
            nx = units[k + 1] if k + 1 < n else nxt_first
            pvu = units[k - 1] if k > 0 else entry_prev
            qk = qk_list(nx, par ^ 1) if nx else []
            pv = []
            if pvu:
                fst = firsts and k > 0 and pvu['s'] not in seen
                seen.add(pvu['s'])
                pv = pv_list(pvu, par ^ 1, fst)
            aq, ap, pre = [], [], ["s_waitcnt lgkmcnt(2)" if reload or k < 2 else "s_waitcnt lgkmcnt(0)"]
            if not qk:
                pre.append("s_nop 0")
            if reload and k + 1 < n and (k + 2 == n or units[k + 2]['p'] != nx['p']):
                aq = krl(nx['p'])
            if pvu and k > 0 and u['p'] != pvu['p'] and reload:
                ap = vrl(pvu['p'], 0)
            if k == 0 and entry_prev is not None:
                ap = vrl(0, v_adj_entry)
            if pfl and firsts:
                pre = pre + pfl.pop(0)
            block(u, par, qk, pv, aq, ap, pre)
    u4 = [unit(1, 2, "g4"), unit(1, 3, "g4")] + [unit(0, s_, "g4") for s_ in range(4)]
    A("s_waitcnt lgkmcnt(6)")
    for l in qk_list(u4[0], 0): A(l)
    A("s_nop 7")
    group(u4, None, FIRSTU, True, firsts=True)
    while pfl:
        for l in pfl.pop(0): A(l)
    A("s_mov_b32 s52, s46")
    A("s_cmp_eq_u32 s46, 0")
    A("s_cbranch_scc1 L_atB_exit")
    A.label("L_atB_loop")
    A("v_subrev_u32 v6, 4096, v6")
    uf = [unit(p, s_, "full") for p in (1, 0) for s_ in range(4)]
    group(uf, LASTU, FIRSTU, True)
    A("s_sub_u32 s52, s52, 1")
    A("s_cmp_lg_u32 s52, 0")
    A("s_cbranch_scc1 L_atB_loop")
    A("s_cmp_eq_u32 s25, 0")
    A("s_cbranch_scc1 L_atB_exit")
    u0 = [unit(1, s_, "g0") for s_ in range(4)] + [unit(0, 0, "g0"), unit(0, 1, "g0")]
    group(u0, LASTU, None, False, v_adj_entry=0)
    A("s_waitcnt lgkmcnt(0)")
    A("s_nop 0")
    for l in pv_list(u0[-1], 1): A(l)
    A("s_branch L_atB_done")
    A.label("L_atB_exit")
    A("s_nop 1")
    for l in pv_list(LASTU, 1): A(l)
    A.label("L_atB_done")
    A("s_add_u32 s45, s44, %d" % AH_G)
    A("s_nop 7")
    for s_ in range(4):
        A(f"v_rcp_f32 v{TM+ (s_&1)*2}, v{LA+4*s_}")
        A("s_nop 0")
        for t in range(2):
            o = OA + (s_ * 2 + t) * 4
            for e in (0, 2):
                A(f"v_pk_mul_f32 {vr(o+e,2)}, {vr(o+e,2)}, {vr(TM+(s_&1)*2,2)} op_sel_hi:[1,0]")
            A(f"v_cvt_pk_bf16_f32 v{16+4*s_+2*t}, v{o}, v{o+1}")
            A(f"v_cvt_pk_bf16_f32 v{16+4*s_+2*t+1}, v{o+2}, v{o+3}")
        A(f"buffer_store_dwordx4 {vr(16+4*s_,4)}, v1, s[28:31], {'s44' if s_ < 2 else 's45'} offen offset:{1024*(s_&1)} {cfg.get('ofl', hfl)}")
    stamp(A, 5)
    stamp_out(A, 7, 1)
    A.label("L_g1_end")
    A("s_endpgm")
    return name, kernel_desc(name, 256 + 128, 102, 256), (256, 256, KVB + 65536)

def gen_g2(A, cfg):
    name = "g2_kernel"
    kernel_begin(A, name)
    distA, DW, RB = cfg["distA"], cfg["DW"], cfg["RB"]
    NF = cfg.get("NF", 28)
    NH = 72 - 2 * NF
    NS = NF + NH
    G0 = 72 - NF
    S = RAS = 4
    assert distA <= RAS - 1 and DW <= S - 1 and NF % 4 == 0
    GRP = 4096
    STG = 16384
    EPI = S * STG
    ACC0 = 64
    accb = lambda j, m: ACC0 + (j * 2 + m) * 4
    acc = lambda j, m: vr(accb(j, m), 4)
    BF0 = 128
    T0 = 2 * NF
    areg = lambda t: (((t >> 1) % RAS) * 16 + (t & 1) * 8) if t < T0 else ((t - T0 + 8) % 16) * 8
    hbase = lambda hs: (65536 + hs * 8192) if hs < 8 else (hs - 8) * 8192
    ph = cfg.get("phase", 4)
    A("s_cmp_ge_u32 s2, 256")
    A("s_cbranch_scc1 L_g2_end")
    stamp(A, 0)
    A(f"s_load_dwordx4 s[16:19], s[0:1], {KA_W2}")
    A(f"s_load_dwordx2 s[20:21], s[0:1], {KA_WO}")
    A(f"s_load_dwordx2 s[22:23], s[0:1], {KA_WS}")
    A(f"s_load_dwordx2 s[56:57], s[0:1], {KA_X}")
    A(f"s_load_dwordx2 s[58:59], s[0:1], {KA_OUT}")
    A("v_lshrrev_b32 v1, 6, v0")
    A("v_and_b32 v0, 63, v0")
    A("s_nop 0")
    A("v_readfirstlane_b32 s24, v1")
    A("s_and_b32 s25, s2, 3")
    A("s_lshl_b32 s25, s25, 2")
    A("s_bfe_u32 s26, s2, 0x20003")
    A("s_add_u32 s25, s25, s26")
    A("s_lshr_b32 s26, s2, 5")
    A("s_bfe_u32 s27, s2, 0x10002")
    A("v_lshlrev_b32 v1, 4, v0")
    A("v_lshrrev_b32 v2, 3, v0")
    A("v_bfe_u32 v3, v0, 1, 2")
    A("v_bfe_u32 v12, v0, 4, 2")
    A("v_xor_b32 v3, v3, v12")
    A("v_lshlrev_b32 v2, 11, v2")
    A("v_lshl_add_u32 v2, v3, 5, v2")
    A("v_and_b32 v3, 1, v0")
    A("v_lshl_add_u32 v2, v3, 4, v2")
    A("s_lshl_b32 s28, s27, 7")
    A("s_xor_b32 s29, s28, 128")
    for cb in range(2):
        A(f"v_add_u32 v3, {'s28' if cb == 0 else 's29'}, v2")
        for h in range(2):
            p = cb * 2 + h
            A(f"v_add_u32 v{8+p}, {4096 + h*16384 - p*1024}, v3")
    if ph == 4:
        A("s_xor_b32 s53, s25, s26")
        A("s_and_b32 s53, s53, 3")
    elif ph == 2:
        A("s_xor_b32 s53, s25, s26")
        A("s_and_b32 s53, s53, 1")
    else:
        A("s_mov_b32 s53, 0")
    A(f"s_mul_i32 s30, s27, {G0}")
    A(f"s_mul_i32 s31, s24, {16*2048}")
    A("s_lshl_b32 s32, s26, 8")
    A("s_add_u32 s31, s31, s32")
    for u in range(4):
        A(f"s_xor_b32 s33, s53, {u}")
        A("s_add_u32 s33, s33, s30")
        A(f"s_lshl_b32 s{40+u}, s33, 12")
        A("s_lshl_b32 s33, s33, 17")
        A(f"s_add_u32 s{44+u}, s33, s31")
    A(f"s_lshl_b32 s51, s24, 12")
    A(f"s_lshl_b32 s63, s24, 11")
    A("s_lshl_b32 s54, s30, 12")
    A("s_lshl_b32 s55, s30, 17")
    A("s_add_u32 s30, s28, s32")
    A("s_lshl_b32 s28, s25, 2")
    A("s_add_u32 s28, s28, s24")
    A(f"s_mul_i32 s29, s28, {AH_G}")
    A(f"s_add_u32 s29, s29, {WS_AH}")
    A("v_lshrrev_b32 v3, 4, v0")
    A("v_lshlrev_b32 v3, 3, v3")
    A("s_waitcnt lgkmcnt(0)")
    A("s_sub_u32 s8, s16, 4096")
    A("s_subb_u32 s9, s17, 0")
    make_srd(A, 8, "s8", "s9", 0 if cfg.get("skipW") else 72 * 131072 + 4096)
    A("s_mov_b32 s48, s8")
    A("s_mov_b32 s49, s9")
    A(f"s_sub_u32 s20, s20, {4096 + 56*131072}")
    A("s_subb_u32 s21, s21, 0")
    A("s_and_b32 s21, s21, 0xffff")
    A("s_add_u32 s4, s22, s29")
    A("s_addc_u32 s5, s23, 0")
    make_srd(A, 4, "s4", "s5", 0 if cfg.get("skipA") else AH_G)

    P = Pipe(A)
    P.MS = 2
    P.lg_every = cfg.get("lg_every", 4)
    ntl = lambda i: 8 if i < 2 * NF else 4
    P.tiles = lambda i: list(range(ntl(i)))
    P.mfma = lambda i, j, m: (f"v_mfma_f32_16x16x32_bf16 {acc(j,m)}, {ar(BF0+((i%RB)*8+j)*4,4)}, "
                              f"{ar(areg(i)+4*m,4)}, {acc(j,m)}")
    def aload(c, half):
        u = c % 4
        l = []
        if NF <= c < NF + 4 and half == 0:
            l.append(f"s_sub_u32 s{40+u}, s{40+u}, s54")
        l += [f"buffer_load_dwordx4 {ar(areg(2*c+half)+4*m,4)}, v1, s[4:7], s{40+u} offen offset:{2048*half+1024*m}" for m in range(2)]
        if half == 1:
            l.append(f"s_add_u32 s{40+u}, s{40+u}, 16384")
        return l
    def dma(c, half):
        u = c % 4
        l = []
        if half == 0:
            l.append(f"s_add_u32 m0, s51, {(c%S)*STG}" if c < NF else f"s_add_u32 m0, s63, {hbase(c-NF)}")
            if c < NF and u == 0:
                l.append(f"s_cmp_ge_u32 s44, {56*131072}")
                l.append("s_cselect_b64 s[8:9], s[20:21], s[48:49]")
            elif NF <= c < NF + 4:
                if c == NF:
                    l.append("s_mov_b64 s[8:9], s[48:49]")
                l.append(f"s_sub_u32 s{44+u}, s{44+u}, s55")
            else:
                l.append("s_nop 0")
        ps = ((0, 1) if half == 0 else (2, 3)) if c < NF else (half,)
        l += [f"buffer_load_dwordx4 v{8+p}, s[8:11], s{44+u} offen offset:{1024*p} lds" for p in ps]
        if half == 1:
            l.append(f"s_add_u32 s{44+u}, s{44+u}, {4*131072}")
        return l
    extra = {}
    RATE = cfg.get("rate", 6)
    def normal(i):
        r = []
        q, sub = (i + RB) // 2, (i + RB) % 2
        c = q + DW - 1
        if 0 <= c < NS:
            r.append(("W", c, sub))
        t = i + 2 * distA
        if 0 <= t < 2 * NS:
            r.append(("A", t))
        return r
    done = set()
    for i in range(-20, T0):
        done.update(normal(i))
    pend = [("W", c, h) for c in range(NF, NS) for h in range(2)] + [("A", t) for t in range(T0, 2 * NS)]
    pend = [x for x in pend if x not in done]
    pend.sort(key=lambda x: (2 * x[1] - RB - 1 + 0.1 * x[2]) if x[0] == "W" else x[1])
    firstbar = T0 if (T0 + RB) % 2 == 0 else T0 + 1
    def legal(x, i):
        if x[0] == "W":
            return x[1] - NF < 8 or i >= firstbar
        tau = x[1] - T0
        return tau < 8 or x[1] - 16 < i
    sched = {}
    def make_sched():
        for i in range(T0, 2 * NS):
            n = sum(1 for l, _ in extra.get(i, []) for z in l if isvm(z))
            sched[i] = []
            while pend and n < RATE:
                cand = [x for x in pend if legal(x, i)]
                if not cand:
                    break
                x = cand[0]
                pend.remove(x); sched[i].append(x)
                n += 1 if x[0] == "W" else 2
        assert not pend
    def loads(i):
        r = list(extra.get(i, []))
        for x in (normal(i) if i < T0 else sched[i]):
            if x[0] == "W":
                r.append((dma(x[1], x[2]), ("W", x[1])))
            else:
                r.append((aload(x[1] >> 1, x[1] & 1), ("A", x[1])))
        return r
    P.loads = loads
    def needs(i):
        tags = {("A", i)}
        bar = (i + RB) % 2 == 0 and (i + RB) // 2 < NS
        if bar:
            tags.add(("W", (i + RB) // 2))
        return tags, bar
    P.needs = needs
    def dsread(t, j):
        b = BF0 + ((t % RB) * 8 + j) * 4
        if t < T0:
            o = ((t >> 1) % S) * STG + (t & 1) * 2 * GRP + (j >> 2) * 2048
            return [f"ds_read_b64_tr_b16 {ar(b,2)}, v{4+(j&3)} offset:{o}",
                    f"ds_read_b64_tr_b16 {ar(b+2,2)}, v{4+(j&3)} offset:{o+GRP}"]
        o = hbase((t >> 1) - NF) + (t & 1) * 4096
        vb = (54 if o >= 65536 else 4) + j
        o &= 65535
        return [f"ds_read_b64_tr_b16 {ar(b,2)}, v{vb} offset:{o}",
                f"ds_read_b64_tr_b16 {ar(b+2,2)}, v{vb} offset:{o+2048}"]
    def reads(i, j):
        t = i + RB
        if t < 2 * NS and j < ntl(t):
            return [(dsread(t, j), (t, j))]
        return []
    P.reads = reads
    P.rneed = lambda i, j: (i, j)
    BB = 32
    nW0 = [0]
    for i in range(-max(2 * distA, 2 * DW + RB), 0):
        for lst, tag in loads(i):
            P.emit(lst, tag)
            if tag == ("W", 0):
                nW0[0] += 1
                if nW0[0] == 2:
                    make_srd(A, 36, "s18", "s19", 2048)
                    P.emit([f"buffer_load_dwordx2 {vr(BB+2*j,2)}, v3, s[36:39], s30 offen offset:{32*j}" for j in range(4)], "b2")
    A("v_lshrrev_b32 v12, 2, v0")
    A("v_and_b32 v13, 3, v0")
    A("v_lshlrev_b32 v13, 3, v13")
    A("v_lshl_add_u32 v13, v12, 7, v13")
    A("v_bfe_u32 v12, v0, 3, 2")
    for t in range(4):
        A(f"v_xor_b32 v14, {t}, v12")
        A(f"v_lshl_add_u32 v{4+t}, v14, 5, v13")
        A(f"v_add_u32 v{54+t}, 0x10000, v{4+t}")
    for j in range(4, 8):
        for m in range(2):
            for r in range(4):
                A(f"v_mov_b32 v{accb(j,m)+r}, 0")
    A("s_lshl_b32 s33, s2, 2")
    A("s_add_u32 s33, s33, s24")
    A("s_lshl_b32 s50, s33, 13")
    A(f"s_add_u32 s50, s50, {WS_PART}")
    A("s_xor_b32 s60, s50, 0x20000")
    A("s_lshl_b32 s61, s33, 7")
    A(f"s_add_u32 s61, s61, {WS_FLAG + 65536}")
    A("s_xor_b32 s62, s61, 0x800")
    A("s_add_u32 s35, s50, 4096")
    A("s_lshl_b32 s31, s28, 16")
    A("s_add_u32 s31, s31, s30")
    A("v_lshrrev_b32 v2, 3, v0")
    A("v_and_b32 v3, 7, v0")
    A("s_lshl_b32 s33, s24, 13")
    A(f"s_add_u32 s33, s33, {EPI}")
    A("v_and_b32 v12, 15, v0")
    A("v_lshrrev_b32 v13, 4, v0")
    A("v_and_b32 v14, 7, v0")
    A("v_xor_b32 v13, v13, v14")
    A("v_lshlrev_b32 v12, 8, v12")
    A("v_add_u32 v12, s33, v12")
    for j in range(2):
        A(f"v_xor_b32 v14, {4*j}, v13")
        A(f"v_lshl_add_u32 v{48+j}, v14, 4, v12")
    A("v_lshlrev_b32 v12, 8, v2")
    A("v_add_u32 v12, s33, v12")
    A("v_lshlrev_b32 v13, 1, v3")
    A("v_xor_b32 v13, v13, v2")
    A("v_lshl_add_u32 v52, v13, 4, v12")
    A("v_xor_b32 v13, 1, v13")
    A("v_lshl_add_u32 v53, v13, 4, v12")
    A("v_lshlrev_b32 v2, 11, v2")
    A("v_lshl_add_u32 v2, v3, 4, v2")
    P.vwait({("W", 0), "b2"})
    P.forget("b2")
    A("s_barrier")
    for t in range(RB):
        for j in range(8):
            P.emit(dsread(t, j), (t, j))
    for j in range(4):
        for m in range(2):
            d = accb(j, m)
            A(f"v_lshlrev_b32 v{d}, 16, v{BB+2*j}")
            A(f"v_and_b32 v{d+1}, 0xffff0000, v{BB+2*j}")
            A(f"v_lshlrev_b32 v{d+2}, 16, v{BB+2*j+1}")
            A(f"v_and_b32 v{d+3}, 0xffff0000, v{BB+2*j+1}")
    make_srd(A, 36, "s22", "s23", WS_BYTES)
    make_srd(A, 12, "s56", "s57", 4 * MB)
    A("v_mov_b32 v12, 0")
    A("v_mov_b32 v13, 1")
    stamp(A, 1)
    P.loop(0, T0 - 8, 8, "L_g2_loop", "s52")
    st = [f"buffer_store_dwordx4 {acc(4+q//2, q%2)}, v1, s[36:39], {'s50' if q < 4 else 's35'} offen offset:{1024*(q%4)} {cfg.get('psfl','sc1')}" for q in range(8)]
    extra[T0] = [(st[:4], "ps")]
    extra[T0 + 1] = [(st[4:], "ps")]
    XB = 96
    x_at = cfg.get("x_at", 2)
    extra[T0 + x_at] = [([f"buffer_load_dwordx4 {vr(XB,4)}, v2, s[12:15], s31 offen", "s_add_u32 s32, s31, 16384",
                          f"buffer_load_dwordx4 {vr(XB+4,4)}, v2, s[12:15], s32 offen", "s_add_u32 s32, s32, 16384",
                          f"buffer_load_dwordx4 {vr(XB+8,4)}, v2, s[12:15], s32 offen", "s_add_u32 s32, s32, 16384",
                          f"buffer_load_dwordx4 {vr(XB+12,4)}, v2, s[12:15], s32 offen"], "x")]
    fl_at, poll_at, chk_at = cfg.get("fl_at", 6), cfg.get("poll_at", 17), cfg.get("chk_at", 20)
    PB = 16
    pl = [f"buffer_load_dwordx4 {vr(PB+4*q,4)}, v1, s[36:39], {'s60' if q < 4 else 's35'} offen offset:{1024*(q%4)} sc1" for q in range(8)]
    for q in range(2):
        extra[T0 + chk_at + q] = [(pl[4*q:4*q+4], "pl")]
    make_sched()
    P.run(T0 - 8, T0)
    stamp(A, 2)
    P.run(T0, T0 + fl_at)
    P.vwait({"ps"})
    stamp(A, 3)
    A("s_mov_b64 exec, 1")
    P.emit(["buffer_store_dword v13, v12, s[36:39], s61 offen sc1"], "flag")
    A("s_mov_b64 exec, -1")
    P.run(T0 + fl_at, T0 + poll_at)
    P.emit(["buffer_load_dword v14, v12, s[36:39], s62 offen sc1"], "poll")
    P.run(T0 + poll_at, T0 + chk_at)
    stamp(A, 4)
    if not cfg.get("nopoll"):
        poll_check(A, P, "v14", "v12", "s[36:39]", "s62", "poll", "L_g2_poll")
    stamp(A, 5)
    A("s_add_u32 s35, s60, 4096")
    P.run(T0 + chk_at, 2 * NS)
    make_srd(A, 12, "s58", "s59", 4 * MB)
    A("s_add_u32 s32, s31, 16384")
    A("s_add_u32 s33, s31, 32768")
    A("s_add_u32 s34, s31, 49152")
    A("s_waitcnt vmcnt(0)")
    for q in range(8):
        j, m = q // 2, q % 2
        a = accb(j, m)
        for e in (0, 2):
            A(f"v_pk_add_f32 {vr(a+e,2)}, {vr(a+e,2)}, {vr(PB+4*q+e,2)}")
        A(f"ds_write_b128 v{48+(j&1)}, {vr(a,4)} offset:{m*4096 + (j>>1)*128}")
    A("s_waitcnt lgkmcnt(0)")
    for q in range(4):
        A(f"ds_read_b128 {vr(PB+8*q,4)}, v52 offset:{q*2048}")
        A(f"ds_read_b128 {vr(PB+8*q+4,4)}, v53 offset:{q*2048}")
    XU = 64
    for q in range(4):
        for d in range(4):
            A(f"v_lshlrev_b32 v{XU+8*q+2*d}, 16, v{XB+4*q+d}")
            A(f"v_and_b32 v{XU+8*q+2*d+1}, 0xffff0000, v{XB+4*q+d}")
    for q in range(4):
        A(f"s_waitcnt lgkmcnt({6-2*q})")
        for d in range(4):
            A(f"v_pk_add_f32 {vr(PB+8*q+2*d,2)}, {vr(PB+8*q+2*d,2)}, {vr(XU+8*q+2*d,2)}")
        for d in range(4):
            A(f"v_cvt_pk_bf16_f32 v{XB+4*q+d}, v{PB+8*q+2*d}, v{PB+8*q+2*d+1}")
        A(f"buffer_store_dwordx4 {vr(XB+4*q,4)}, v2, s[12:15], s{31+q} offen {cfg.get('ofl','')}")
    stamp_out(A, 7, 2)
    A.label("L_g2_end")
    A("s_endpgm")
    nacc = BF0 + RB * 32
    return name, kernel_desc(name, 128 + nacc, 100, 128), (256, 256, 131072)

try:
    HEADER = open("parallel_sum__sliding_block__dense_activation_gelu__prompt.s.ref").read().split("; Override")[0]
except Exception:
    HEADER = ""

def build(cfg):
    A = Asm()
    ks = [gen_ln(A, cfg["ln"]), gen_g1(A, cfg["g1"]), gen_g2(A, cfg["g2"])]
    out = HEADER
    for n, d, (g, b, l) in ks:
        out += f"; @launch kernel={n} grid=({g},1,1) block=({b},1,1) lds={l}\n"
    out += '.amdgcn_target "amdgcn-amd-amdhsa--gfx950"\n.text\n'
    out += A.text()
    out += '.section .rodata,"a"\n'
    for n, d, _ in ks:
        out += d
    return out

DEFAULT = dict(
    ln=dict(),
    g1=dict(distA=2, DW=3, early=True, hfl='', pf=False),
    g2=dict(distA=3, DW=3, RB=2, rate=16, fl_at=4),
)
NSTAMP = {0: 5, 1: 7, 2: 7}

if __name__ == "__main__":
    out = sys.argv[1] if len(sys.argv) > 1 else "parallel_sum__sliding_block__dense_activation_gelu__prompt.s"
    open(out, "w").write(build(DEFAULT))
    print("wrote", out)
```

```python
from asmlib import *
import re

def isvm(s):
    return s.startswith("buffer_") or s.startswith("global_")

class Pipe:
    def __init__(self, A):
        self.A = A
        self.vlog = []
        self.llog = []
        self.lg_every = 4
        self.cand = None
        self.vdone = -1
        self.ldone = -1
    def emit(self, lst, tag):
        for s in lst:
            self.A(s)
            if isvm(s):
                self.vlog.append(tag)
            elif s.startswith("ds_"):
                self.llog.append(tag)
    def vcount(self, tags):
        last = -1
        for k in range(len(self.vlog) - 1, -1, -1):
            if self.vlog[k] in tags:
                last = k; break
        assert all(t in self.vlog for t in tags), (tags,)
        return len(self.vlog) - 1 - last
    def vwait(self, tags):
        n = self.vcount(tags)
        self.A(f"s_waitcnt vmcnt({min(n, 63)})")
    def forget(self, tag):
        self.vlog = [t for t in self.vlog if t != tag]
    def lcount(self, tag):
        for k in range(len(self.llog) - 1, -1, -1):
            if self.llog[k] == tag:
                return len(self.llog) - 1 - k
        raise AssertionError(tag)
    def step(self, i):
        A = self.A
        tags, bar = self.needs(i)
        if tags:
            self.vwait(tags)
        if bar:
            A("s_barrier")
        tiles = self.tiles(i)
        MS = self.MS
        fill = []
        for lst, tag in self.loads(i):
            cur = []
            for s in lst:
                cur.append(s)
                if isvm(s):
                    fill.append((cur, tag)); cur = []
            if cur:
                fill.append((cur, tag))
        nm = len(tiles) * MS
        cand = [k for k in range(nm) if (k % MS) != MS - 1 or MS == 1]
        if self.cand and self.cand(i):
            cand = self.cand(i)
        pos = {}
        for f in range(len(fill)):
            k = cand[(f * len(cand)) // len(fill)]
            pos.setdefault(k, []).append(fill[f])
        for jj, j in enumerate(tiles):
            if jj % self.lg_every == 0:
                jl = tiles[min(len(tiles) - 1, jj + self.lg_every - 1)]
                A(f"s_waitcnt lgkmcnt({min(15, self.lcount(self.rneed(i, jl)))})")
            for m in range(MS):
                k = jj * MS + m
                s = self.mfma(i, j, m)
                if s:
                    A(s)
                for lst, tag in pos.get(k, []):
                    self.emit(lst, tag)
            for lst, tag in self.reads(i, j):
                self.emit(lst, tag)
    def run(self, i0, i1):
        for i in range(i0, i1):
            self.step(i)
    def loop(self, i0, i1, U, label, scnt, align=True):
        A = self.A
        n = (i1 - i0) // U
        assert n * U == i1 - i0
        if n == 1:
            return self.run(i0, i1)
        A(f"s_mov_b32 {scnt}, {n}")
        if align:
            A(".p2align 6")
        A.label(label)
        start = len(A.lines)
        self.run(i0, i0 + U)
        body = A.lines[start:]
        A(f"s_sub_u32 {scnt}, {scnt}, 1")
        A(f"s_cmp_lg_u32 {scnt}, 0")
        A(f"s_cbranch_scc1 {label}")
        save = A.lines
        for it in range(1, n):
            A.lines = []
            self.run(i0 + it * U, i0 + (it + 1) * U)
            assert len(A.lines) == len(body), "loop length differs"
            for k, (a, b) in enumerate(zip(A.lines, body)):
                if a != b:
                    ma, mb = re.fullmatch(r"\s*s_waitcnt vmcnt\((\d+)\)", a), re.fullmatch(r"\s*s_waitcnt vmcnt\((\d+)\)", b)
                    if not (ma and mb):
                        raise AssertionError(f"loop not periodic at iter {it}: {a!r} vs {b!r}")
                    if int(ma.group(1)) < int(mb.group(1)):
                        body[k] = a
                        save[start + k] = a
        A.lines = save
```

```python
import sys, math
from asmlib import *
from pipe import *

MB = 1 << 20
WS_XN = 0
WS_KV = 4 * MB
WS_AH = 16 * MB
AH_G = 144 * 2048
WS_FLAG = 39 * MB
F0_OFF = WS_FLAG
FH_OFF = WS_FLAG + 0x4000
FO_OFF = WS_FLAG + 0x8000
FKV_OFF = WS_FLAG + 0x10000
FP_OFF = WS_FLAG + 0x20000
WS_PART = 40 * MB
WS_BYTES = 256 * MB
NEG = -1.0e30
WS_STAMP = 200 * MB
STAMP = False
NAME = "parallel_sum__sliding_block__dense_activation_gelu__prompt_kernel"

PX, PWQKV, PWO, PW1, PB1, PW2, PB2, POUT, PDBG, PWS = 4, 6, 8, 12, 14, 16, 18, 20, 22, 24
WV, MT, JT, ODD = "s26", "s27", "s28", "s29"
SA, SW, SP, SWS, ST = 32, 36, 40, 44, 48
srd = lambda b: f"s[{b}:{b+3}]"
sA = lambda u: f"s{52+u}"
sW = lambda u: f"s{56+u}"
sP = lambda u: f"s{60+u}"
WINC, PINC, LW4, CNT, PH, LW2 = "s64", "s65", "s66", "s67", "s68", "s69"
NONCE = "s[70:71]"
T = [f"s{78+i}" for i in range(18)]
VST = 47
nst = [0]
def stamp(A):
    if STAMP:
        i = nst[0]
        A("s_memtime s[96:97]")
        A("s_memrealtime s[98:99]")
        A("s_waitcnt lgkmcnt(0)")
        A(f"v_writelane_b32 v{VST}, s96, {2*i}")
        A(f"v_writelane_b32 v{VST}, s98, {2*i+1}")
    nst[0] += 1
def stamp_out(A):
    if not STAMP:
        nst[0] += 1
        return
    A("s_waitcnt vmcnt(0)")
    stamp(A)
    A("s_lshl_b32 s96, s2, 2")
    A(f"s_add_u32 s96, s96, {WV}")
    A("s_lshl_b32 s96, s96, 8")
    A(f"s_add_u32 s96, s96, {WS_STAMP}")
    A("v_lshlrev_b32 v2, 2, v0")
    A(f"buffer_store_dword v{VST}, v2, {srd(SWS)}, s96 offen")

def psrd(A, d, p, nbytes):
    make_srd(A, d, f"s{p}", f"s{p+1}", nbytes)

def poll_issue(P, vd, voff, soff, tag):
    P.emit([f"buffer_load_dwordx2 {vr(vd,2)}, {voff}, {srd(SWS)}, {soff} offen sc1"], tag)
def poll_check(A, P, vd, voff, soff, tag, lab):
    P.vwait({tag})
    A(f"v_cmp_ne_u64 vcc, {NONCE}, {vr(vd,2)}")
    A(f"s_mov_b32 {T[17]}, 0x40000")
    A("s_nop 0")
    A("s_cmp_eq_u64 vcc, 0")
    A(f"s_cbranch_scc1 {lab}_ok")
    A.label(f"{lab}_spin")
    A("s_sleep 1")
    A(f"buffer_load_dwordx2 {vr(vd,2)}, {voff}, {srd(SWS)}, {soff} offen sc1")
    A("s_waitcnt vmcnt(0)")
    A(f"v_cmp_ne_u64 vcc, {NONCE}, {vr(vd,2)}")
    A(f"s_sub_u32 {T[17]}, {T[17]}, 1")
    A(f"s_cmp_eq_u32 {T[17]}, 0")
    A(f"s_cbranch_scc1 {lab}_ok")
    A("s_cmp_lg_u64 vcc, 0")
    A(f"s_cbranch_scc1 {lab}_spin")
    A.label(f"{lab}_ok")
VN, VZ = 44, 46
def flag_store(A, P, soff, counted=True):
    A("s_mov_b64 exec, 1")
    l = f"buffer_store_dwordx2 {vr(VN,2)}, v{VZ}, {srd(SWS)}, {soff} offen sc1"
    if counted: P.emit([l], "flag")
    else: A(l)
    A("s_mov_b64 exec, -1")

def gen(A, cfg):
    nst[0] = 0
    c1cfg, c2cfg = cfg["g1"], cfg["g2"]
    kernel_begin(A, NAME)
    STG = 16384
    KVB = 98304
    RS = 6
    ACC0 = 48
    accb = lambda j, m: ACC0 + (j * 4 + m) * 4
    acc = lambda j, m: vr(accb(j, m), 4)
    BF0 = 96
    distA, DW = c1cfg["distA"], c1cfg["DW"]
    assert 4 <= distA <= 5 and DW == 5
    PR = c1cfg.get('PR', 256)
    pfm = c1cfg.get('pfm', 0)
    A("s_cmp_ge_u32 s2, 256")
    A("s_cbranch_scc1 L_end")
    A("s_load_dwordx16 s[4:19], s[0:1], 0")
    A("s_load_dwordx4 s[20:23], s[0:1], 64")
    A("s_load_dwordx2 s[24:25], s[0:1], 80")
    if STAMP:
        A(f"v_mov_b32 v{VST}, 0")
    stamp(A)
    A("v_mov_b32 v39, v0")
    A("v_lshrrev_b32 v1, 6, v0")
    A("v_and_b32 v0, 63, v0")
    A(f"v_mov_b32 v{VZ}, 0")
    A(f"v_readfirstlane_b32 {WV}, v1")
    mapa = c1cfg.get("map", "a") == "a"
    if mapa:
        A(f"s_bfe_u32 {MT}, s2, 0x30003")
        A(f"s_and_b32 {JT}, s2, 7")
        A(f"s_lshl_b32 {JT}, {JT}, 2")
        A(f"s_lshr_b32 {ODD}, s2, 6")
        A(f"s_add_u32 {JT}, {JT}, {ODD}")
    else:
        A(f"s_and_b32 {MT}, s2, 1")
        A(f"s_lshl_b32 {MT}, {MT}, 2")
        A(f"s_bfe_u32 {JT}, s2, 0x20003")
        A(f"s_add_u32 {MT}, {MT}, {JT}")
        A(f"s_bfe_u32 {JT}, s2, 0x20001")
        A(f"s_lshl_b32 {JT}, {JT}, 3")
        A(f"s_lshr_b32 {ODD}, s2, 5")
        A(f"s_add_u32 {JT}, {JT}, {ODD}")
    A(f"s_and_b32 s3, {JT}, 5")
    A("s_cmp_eq_u32 s3, 4")
    A(f"s_cselect_b32 s3, {c1cfg.get('sx', 2)}, 0")
    A(f"s_xor_b32 s3, {JT}, s3")
    A(f"s_and_b32 {ODD}, s3, 1")
    A("v_lshlrev_b32 v1, 4, v0")
    A("v_lshrrev_b32 v30, 5, v39")
    A("v_and_b32 v31, 31, v39")
    A("v_lshlrev_b32 v3, 11, v30")
    A("v_lshl_add_u32 v3, v31, 4, v3")
    A(f"s_lshl_b32 {T[0]}, {MT}, 5")
    A(f"s_add_u32 {T[0]}, {T[0]}, {JT}")
    A(f"s_lshl_b32 {T[1]}, {T[0]}, 14")
    A("s_waitcnt lgkmcnt(0)")
    psrd(A, ST, PX, 4 * MB)
    P = Pipe(A)
    XR = 128
    for i in range(4):
        P.emit([f"buffer_load_dwordx4 {vr(XR+4*i,4)}, v3, {srd(ST)}, {T[1]} offen offset:{512*i} {c1cfg.get('xfl','nt')}"], ("x", i))
    if c1cfg.get("cpf", True):
        A(f"s_getpc_b64 s[{SP}:{SP+1}]")
        A.label("L_pc")
        A(f"s_and_b32 s{SP+1}, s{SP+1}, 0xffff")
        A(f"s_mov_b32 s{SP+2}, L_end-L_pc")
        A(f"s_mov_b32 s{SP+3}, 0x20000")
        A(f"s_lshr_b32 {T[2]}, s2, 3")
        A(f"s_lshl_b32 {T[2]}, {T[2]}, 2")
        A(f"s_add_u32 {T[2]}, {T[2]}, {WV}")
        A(f"s_and_b32 {T[2]}, {T[2]}, 63")
        A(f"s_lshl_b32 {T[2]}, {T[2]}, 10")
        P.emit([f"buffer_load_dwordx4 a[240:243], v1, {srd(SP)}, {T[2]} offen"], "cpf")
    p0n = c1cfg.get("p0n", 5)
    psrd(A, 72, PW2, 7 * MB)
    A("s_lshl_b32 s76, s2, 12")
    A(f"s_lshl_b32 s77, {WV}, 10")
    A("s_add_u32 s76, s76, s77")
    A("s_mov_b32 s77, s76")
    pq = c1cfg.get("pq", 0)
    if pq:
        psrd(A, SW, PWQKV, 6 * MB)
        A(f"s_add_u32 {T[2]}, s76, {(6 - pq) * MB}")
        for q in range(pq):
            P.emit([f"buffer_load_dwordx4 a[244:247], v1, {srd(SW)}, {T[2]} offen", f"s_add_u32 {T[2]}, {T[2]}, {MB}"], "p0")
    for q in range(p0n):
        P.emit(["buffer_load_dwordx4 a[244:247], v1, s[72:75], s76 offen", f"s_add_u32 s76, s76, {MB}"], "p0")
    psrd(A, SWS, PWS, WS_BYTES)
    A(f"s_or_b32 {T[2]}, s2, {WV}")
    A(f"s_cmp_lg_u32 {T[2]}, 0")
    A("s_cbranch_scc1 L_nolead")
    A("s_memrealtime s[96:97]")
    psrd(A, ST, PDBG, 256)
    A("s_waitcnt lgkmcnt(0)")
    A("s_or_b32 s98, s96, 1")
    A("s_or_b32 s99, s97, 0x40000000")
    A(f"v_mov_b32 v{VN}, s98")
    A(f"v_mov_b32 v{VN+1}, s99")
    A("s_mov_b64 exec, 1")
    A(f"buffer_store_dwordx2 {vr(VN,2)}, v{VZ}, {srd(ST)}, 0 offen sc1")
    A("s_mov_b64 exec, -1")
    A.label("L_nolead")
    ph1 = c1cfg.get("phase", 8)
    if ph1 == 8:
        A(f"s_lshl_b32 {PH}, {JT if mapa else MT}, 1")
        A(f"s_xor_b32 {PH}, {PH}, {MT if mapa else JT}")
    else:
        A(f"s_xor_b32 {PH}, {MT}, {JT}")
    A(f"s_and_b32 {PH}, {PH}, {max(ph1 - 1, 0)}")
    A(f"s_mul_i32 {T[3]}, s3, 224")
    A(f"s_lshl_b32 {LW4}, {WV}, 12")
    A(f"s_lshl_b32 {LW2}, {WV}, 11")
    A(f"s_cmp_ge_u32 {WV}, 2")
    A("s_cbranch_scc1 L_w1setup")
    for p in range(3):
        A(f"v_add_u32 v32, {64*p}, v0")
        A("v_mul_u32_u24 v33, 43691, v32")
        A("v_lshrrev_b32 v33, 19, v33")
        A("v_mul_u32_u24 v34, 12, v33")
        A("v_sub_u32 v34, v32, v34")
        A("v_lshrrev_b32 v35, 2, v34")
        A("v_and_b32 v34, 3, v34")
        A("v_bfe_u32 v36, v33, 2, 1")
        A("v_lshlrev_b32 v36, 1, v36")
        A("v_xor_b32 v34, v34, v36")
        A("v_mul_u32_u24 v33, 6144, v33")
        A("v_lshl_add_u32 v33, v35, 11, v33")
        A("v_lshl_add_u32 v33, v34, 4, v33")
        A(f"v_subrev_u32 v{12+p}, {1024*p}, v33")
    A("v_mov_b32 v15, v1")
    A(f"s_mov_b32 {WINC}, {32*6144}")
    A(f"s_mul_i32 {T[4]}, {WV}, {16*6144}")
    A(f"s_lshl_b32 {T[5]}, {JT}, 6")
    A(f"s_add_u32 {T[4]}, {T[4]}, {T[5]}")
    psrd(A, SW, PWQKV, 0 if c1cfg.get('skipQ') else 1024 * 6144)
    A(f"s_cmp_eq_u32 {WV}, 0")
    A(f"s_cselect_b32 s{SP}, s{PWQKV}, s{PW2}")
    A(f"s_cselect_b32 s{SP+1}, s{PWQKV+1}, s{PW2+1}")
    A(f"s_mov_b32 {T[5]}, {3584*2048 if pfm & 2 else 0}")
    A(f"s_cselect_b32 {T[5]}, {1024*6144 if pfm & 1 else 0}, {T[5]}")
    A(f"s_cselect_b32 {T[6]}, {PR*6144-3072}, 0")
    make_srd(A, SP, f"s{SP}", f"s{SP+1}", T[5])
    A("s_branch L_setupdone")
    A.label("L_w1setup")
    A(f"s_sub_u32 {T[4]}, {WV}, 2")
    A(f"s_lshl_b32 {T[4]}, {T[4]}, 8")
    for p in range(4):
        A(f"v_add_u32 v32, {64*p}, v0")
        A(f"v_add_u32 v32, {T[4]}, v32")
        A("v_mul_u32_u24 v33, 4682, v32")
        A("v_lshrrev_b32 v33, 16, v33")
        A("v_mul_u32_u24 v34, 14, v33")
        A("v_sub_u32 v34, v32, v34")
        A(f"v_lshl_add_u32 v34, {ODD}, 1, v34")
        A("v_subrev_u32 v35, 14, v34")
        A("v_cmp_le_u32 vcc, 14, v34")
        A("s_nop 1")
        A("v_cndmask_b32 v34, v34, v35, vcc")
        A("v_mul_u32_u24 v35, 7168, v33")
        A("v_lshl_add_u32 v35, v34, 4, v35")
        A(f"v_subrev_u32 v{12+p}, {1024*p}, v35")
    A(f"s_mov_b32 {WINC}, {32*7168}")
    A(f"s_mov_b32 {T[4]}, {T[3]}")
    psrd(A, SW, PW1, 0 if c1cfg.get('skipH') else 1024 * 7168)
    A(f"s_cmp_eq_u32 {WV}, 2")
    A(f"s_cselect_b32 {T[5]}, {1024*7168}, {T[5] if pfm & 4 else 0}") if not (pfm & 4) else A(f"s_mov_b32 {T[5]}, {1024*7168}")
    psrd(A, SP, PW1, T[5])
    A(f"s_mov_b32 {T[6]}, {PR*7168-3072}")
    A(f"s_cmp_eq_u32 {WV}, 2")
    A("s_cbranch_scc1 L_setupdone")
    A("v_mov_b32 v15, v1")
    A.label("L_setupdone")
    A(f"s_cmp_eq_u32 {WV}, 2")
    A("s_cselect_b64 s[62:63], -1, 0")
    A("s_mov_b64 vcc, s[62:63]")
    A("s_mov_b32 s52, 0")
    A(f"s_lshl_b32 s53, {PH}, 12")
    A("s_mov_b32 s54, s53")
    A("s_mov_b32 s56, 0")
    A(f"s_mov_b32 s57, {T[4]}")
    A(f"s_mul_i32 s58, {PH}, {WINC}")
    A("s_add_u32 s58, s58, s57")

    areg = lambda k: (k % RS) * 16
    lslot = lambda k: (k % RS) * STG
    def aload(k):
        l = [f"buffer_load_dwordx4 {ar(areg(k)+4*m,4)}, v1, {srd(SA)}, s54 offen offset:{1024*m} {c1cfg.get('afl','sc1')}" for m in range(4)]
        l.insert(1, "s_add_u32 s52, s52, 4096")
        l.append("s_xor_b32 s54, s52, s53")
        return l
    def dma(k):
        fl = c1cfg.get("w0fl", "") if k % 4 == 0 else ""
        l = [f"s_add_u32 m0, {LW4}, {lslot(k)}", "s_add_u32 s56, s56, 1"]
        l.append(f"buffer_load_dwordx4 v12, {srd(SW)}, s58 offen offset:0 {fl} lds")
        l.append(f"s_xor_b32 s59, s56, {PH}")
        l.append(f"buffer_load_dwordx4 v13, {srd(SW)}, s58 offen offset:1024 {fl} lds")
        l.append(f"s_mul_i32 s59, s59, {WINC}")
        l.append(f"buffer_load_dwordx4 v14, {srd(SW)}, s58 offen offset:2048 {fl} lds")
        dm = c1cfg.get("dummy", "br")
        if dm == "exec":
            l.append("s_mov_b64 exec, s[62:63]")
            l.append(f"buffer_load_dwordx4 v15, {srd(SP)}, s58 offen offset:3072 {fl} lds\n    s_mov_b64 exec, -1")
        elif dm == "br":
            l.append(f"s_cbranch_vccz 2\n    buffer_load_dwordx4 v15, {srd(SP)}, s58 offen offset:3072 {fl} lds")
        else:
            l.append(f"buffer_load_dwordx4 v15, {srd(SP)}, s58 offen offset:3072 {fl} lds")
        l.append("s_add_u32 s58, s59, s57")
        return l
    A("v_lshrrev_b32 v5, 2, v31")
    A("v_and_b32 v32, 1, v31")
    A("v_and_b32 v7, 3, v5")
    A("v_lshl_add_u32 v7, v7, 1, v32")
    A("v_xor_b32 v7, v7, v30")
    A("v_lshlrev_b32 v4, 9, v5")
    A("v_lshl_add_u32 v4, v32, 8, v4")
    A("v_lshl_add_u32 v4, v7, 4, v4")
    A("v_bfe_u32 v32, v31, 1, 1")
    A("v_lshl_add_u32 v4, v32, 3, v4")
    A(f"v_add_u32 v4, {KVB}, v4")
    A("v_and_b32 v7, 3, v30")
    A("v_bfe_u32 v32, v39, 4, 1")
    A("v_lshl_add_u32 v7, v7, 1, v32")
    A("v_and_b32 v32, 7, v39")
    A("v_xor_b32 v7, v7, v32")
    A("v_lshlrev_b32 v5, 12, v30")
    A("v_bfe_u32 v32, v39, 3, 2")
    A("v_lshl_add_u32 v5, v32, 8, v5")
    A("v_lshl_add_u32 v5, v7, 4, v5")
    A("v_lshlrev_b32 v6, 4, v39")
    A(f"v_add_u32 v6, {KVB}, v6")
    A(f"s_lshr_b32 {T[1]}, {T[0]}, 3")
    A(f"s_lshl_b32 {T[7]}, {T[1]}, 7")
    A(f"s_and_b32 {T[2]}, {T[0]}, 7")
    A(f"s_lshl_b32 {T[2]}, {T[2]}, 4")
    A(f"s_add_u32 {T[7]}, {T[7]}, {T[2]}")
    A(f"s_add_u32 {T[7]}, {T[7]}, {F0_OFF}")
    A(f"s_lshl_b32 {T[1]}, {T[1]}, 17")
    A(f"s_bfe_u32 {T[2]}, {T[0]}, 0x20001")
    A(f"s_lshl_b32 {T[2]}, {T[2]}, 10")
    A(f"s_add_u32 {T[1]}, {T[1]}, {T[2]}")
    A(f"s_and_b32 {T[2]}, {T[0]}, 1")
    A(f"s_lshl_b32 {T[2]}, {T[2]}, 7")
    A(f"s_add_u32 {T[1]}, {T[1]}, {T[2]}")
    F = 144
    R0 = 176
    for i in range(4):
        P.vwait({("x", i)})
        for d in range(4):
            s = XR + 4 * i + d
            A(f"v_lshlrev_b32 v{F+2*(4*i+d)}, 16, v{s}")
            A(f"v_and_b32 v{F+2*(4*i+d)+1}, 0xffff0000, v{s}")
    stamp(A)
    pr = lambda r: vr(r, 2)
    A(f"v_pk_add_f32 {pr(R0)}, {pr(F)}, {pr(F+2)}")
    A(f"v_pk_add_f32 {pr(R0+2)}, {pr(F+4)}, {pr(F+6)}")
    for p in range(4, 16, 2):
        A(f"v_pk_add_f32 {pr(R0)}, {pr(R0)}, {pr(F+2*p)}")
        A(f"v_pk_add_f32 {pr(R0+2)}, {pr(R0+2)}, {pr(F+2*p+2)}")
    A(f"v_pk_add_f32 {pr(R0)}, {pr(R0)}, {pr(R0+2)}")
    A(f"v_add_f32 v{R0}, v{R0}, v{R0+1}")
    def red32(r, t):
        for sh in (8, 4, 2, 1):
            A("s_nop 1")
            A(f"v_add_f32_dpp v{r}, v{r}, v{r} row_ror:{sh} row_mask:0xf bank_mask:0xf")
        A(f"v_mov_b32 v{t}, v{r}")
        A("s_nop 1")
        A(f"v_permlane16_swap_b32 v{r}, v{t}")
        A("s_nop 1")
        A(f"v_add_f32 v{r}, v{r}, v{t}")
    red32(R0, R0 + 1)
    A(f"v_mul_f32 v{R0}, {fhex(1.0/1024)}, v{R0}")
    for p in range(16):
        A(f"v_pk_add_f32 {pr(F+2*p)}, {pr(F+2*p)}, {pr(R0)} op_sel_hi:[1,0] neg_lo:[0,1] neg_hi:[0,1]")
    A(f"v_pk_mul_f32 {pr(R0+2)}, {pr(F)}, {pr(F)}")
    A(f"v_pk_mul_f32 {pr(R0+4)}, {pr(F+2)}, {pr(F+2)}")
    for p in range(2, 16, 2):
        A(f"v_pk_fma_f32 {pr(R0+2)}, {pr(F+2*p)}, {pr(F+2*p)}, {pr(R0+2)}")
        A(f"v_pk_fma_f32 {pr(R0+4)}, {pr(F+2*p+2)}, {pr(F+2*p+2)}, {pr(R0+4)}")
    A(f"v_pk_add_f32 {pr(R0+2)}, {pr(R0+2)}, {pr(R0+4)}")
    A(f"v_add_f32 v{R0+2}, v{R0+2}, v{R0+3}")
    red32(R0 + 2, R0 + 3)
    A(f"v_mov_b32 v{R0+3}, {fhex(1e-5)}")
    A(f"v_fmac_f32 v{R0+3}, {fhex(1.0/1024)}, v{R0+2}")
    A(f"v_rsq_f32 v{R0+2}, v{R0+3}")
    A("s_nop 0")
    for i in range(4):
        for p in range(4 * i, 4 * i + 4):
            A(f"v_pk_mul_f32 {pr(F+2*p)}, {pr(F+2*p)}, {pr(R0+2)} op_sel_hi:[1,0]")
        for p in range(4 * i, 4 * i + 4):
            A(f"v_cvt_pk_bf16_f32 v{XR+p}, v{F+2*p}, v{F+2*p+1}")
        A(f"ds_write_b64 v4, {pr(XR+4*i)} offset:{4096*i}")
        A(f"ds_write_b64 v4, {pr(XR+4*i+2)} offset:{4096*i+128}")
    psrd(A, ST, PDBG, 256)
    P.emit([f"buffer_load_dwordx2 {vr(VN,2)}, v{VZ}, {srd(ST)}, 0 offen sc1"], "nonce")
    A("s_waitcnt lgkmcnt(0)")
    A("s_barrier")
    for i in range(4):
        A(f"ds_read_b128 {vr(F+4*i,4)}, v6 offset:{4096*i}")
    for i in range(4):
        A(f"s_waitcnt lgkmcnt({3-i})")
        P.emit([f"buffer_store_dwordx4 {vr(F+4*i,4)}, v5, {srd(SWS)}, {T[1]} offen sc1"], "xn")
        if i < 3:
            A(f"s_add_u32 {T[1]}, {T[1]}, 32768")
    stamp(A)
    P.emit(dma(0), ("W", 0))
    psrd(A, SA, PB1, 7168)
    A("v_lshrrev_b32 v2, 4, v0")
    A("v_lshlrev_b32 v2, 3, v2")
    A(f"s_lshl_b32 {T[5]}, {ODD}, 5")
    A(f"s_add_u32 {T[5]}, {T[5]}, {T[3]}")
    A(f"s_cmp_eq_u32 {ODD}, 0")
    A(f"s_cselect_b32 {T[6]}, 192, 0")
    A(f"s_add_u32 {T[6]}, {T[6]}, {T[3]}")
    P.emit([f"buffer_load_dwordx2 v[{16+2*b}:{17+2*b}], v2, {srd(SA)}, {T[5]} offen offset:{32*b}" for b in range(6)]
           + [f"buffer_load_dwordx2 v[28:29], v2, {srd(SA)}, {T[6]} offen"], "bias")
    A(f"s_lshl_b32 {T[2]}, {MT}, 2")
    A(f"s_add_u32 {T[2]}, {T[2]}, {WV}")
    A(f"s_lshl_b32 {T[8]}, {T[2]}, 7")
    A(f"s_add_u32 {T[8]}, {T[8]}, {F0_OFF}")
    A(f"s_lshl_b32 {T[2]}, {T[2]}, 17")
    A(f"s_add_u32 s{SA}, s{PWS}, {T[2]}")
    A(f"s_addc_u32 s{SA+1}, s{PWS+1}, 0")
    make_srd(A, SA, f"s{SA}", f"s{SA+1}", 0 if c1cfg.get('skipA') else 131072)
    A("v_lshrrev_b32 v2, 2, v0")
    A("v_and_b32 v3, 3, v0")
    A("v_lshlrev_b32 v3, 3, v3")
    A("v_mul_u32_u24 v4, 192, v2")
    A("v_add_u32 v4, v4, v3")
    A("v_bfe_u32 v5, v0, 4, 1")
    A("v_lshl_add_u32 v6, v5, 5, v4")
    A("v_xor_b32 v5, 1, v5")
    A("v_lshl_add_u32 v7, v5, 5, v4")
    A("v_mul_u32_u24 v8, 224, v2")
    A("v_add_u32 v8, v8, v3")
    A("v_add_u32 v8, 8192, v8")
    for r in range(3):
        A(f"v_add_u32 v{9+r}, 0x10000, v{6+r}")
    A("v_and_b32 v38, 7, v0")
    A("v_lshlrev_b32 v38, 4, v38")
    spf = c1cfg.get("spf", False)
    bpf = c1cfg.get("bpf", False)
    if spf:
        A(f"s_lshl_b32 {T[2]}, s2, 2")
        A(f"s_add_u32 {T[2]}, {T[2]}, {WV}")
        A(f"s_lshl_b32 {T[4]}, {T[2]}, 10")
        A(f"s_add_u32 {T[4]}, {T[4]}, 60")
        A(f"s_add_u32 s72, s{PW2}, {T[4]}")
        A(f"s_addc_u32 s73, s{PW2+1}, 0")
        A(f"s_lshl_b32 {T[4]}, {T[2]}, 8")
        A(f"s_add_u32 {T[4]}, {T[4]}, 60")
        A(f"s_add_u32 s74, s{PWO}, {T[4]}")
        A(f"s_addc_u32 s75, s{PWO+1}, 0")
    P.vwait({"nonce"})
    A(f"s_mov_b32 {T[17]}, 0x40000")
    A.label("L_nonce")
    A(f"v_readfirstlane_b32 s70, v{VN}")
    A(f"v_readfirstlane_b32 s71, v{VN+1}")
    A(f"s_sub_u32 {T[17]}, {T[17]}, 1")
    A(f"s_cmp_eq_u32 {T[17]}, 0")
    A("s_cbranch_scc1 L_nonce_ok")
    A(f"s_min_u32 {T[2]}, s70, s71")
    A(f"s_cmp_lg_u32 {T[2]}, 0")
    A("s_cbranch_scc1 L_nonce_ok")
    A("s_sleep 1")
    A(f"buffer_load_dwordx2 {vr(VN,2)}, v{VZ}, {srd(ST)}, 0 offen sc1")
    A("s_waitcnt vmcnt(0)")
    A("s_branch L_nonce")
    A.label("L_nonce_ok")
    P.vwait({"xn"})
    A("s_barrier")
    A(f"s_cmp_lg_u32 {WV}, 0")
    A("s_cbranch_scc1 L_nof0")
    flag_store(A, P, T[7], counted=False)
    A.label("L_nof0")
    stamp(A)
    P.emit(dma(1), ("W", 1))
    P.emit(dma(2), ("W", 2))
    psrd(A, ST, PWO, 2 * MB)
    for j in range(6):
        for r in range(16):
            A(f"v_mov_b32 v{accb(j,0)+r}, 0")
    poll_issue(P, 36, "v38", T[8], "f0")
    P.vwait({"bias"})
    A("s_barrier")
    def dsread(k, j):
        off = lslot(k)
        hi = 3 if off >= 65536 else 0
        off &= 65535
        b = BF0 + 4 * j
        if j < 6:
            base = 6 + hi + (j & 1)
            o = off + (j >> 1) * 64
            return [f"ds_read_b64_tr_b16 {ar(b,2)}, v{base} offset:{o}",
                    f"ds_read_b64_tr_b16 {ar(b+2,2)}, v{base} offset:{o+4096}"]
        o = off + (j - 6) * 32
        return [f"ds_read_b64_tr_b16 {ar(b,2)}, v{8+hi} offset:{o}",
                f"ds_read_b64_tr_b16 {ar(b+2,2)}, v{8+hi} offset:{o+3584}"]
    for j in range(13):
        P.emit(dsread(0, j), (0, j))
    poll_check(A, P, 36, "v38", T[8], "f0", "L_pf0")
    stamp(A)
    A("s_mov_b64 vcc, s[62:63]")
    P.vlog = [("W", 0)] * 4 + [("W", 1)] * 4
    P.emit(aload(0), ("A", 0))
    P.emit(aload(1), ("A", 1))
    for b in range(7):
        d = accb(6 + b, 0)
        A(f"v_lshlrev_b32 v{d}, 16, v{16+2*b}")
        A(f"v_and_b32 v{d+1}, 0xffff0000, v{16+2*b}")
        A(f"v_lshlrev_b32 v{d+2}, 16, v{17+2*b}")
        A(f"v_and_b32 v{d+3}, 0xffff0000, v{17+2*b}")
        for m in range(1, 4):
            for r in range(4):
                A(f"v_mov_b32 v{accb(6+b,m)+r}, v{d+r}")

    E = 5
    EARLY, LATE = [2, 3, 4, 5], [0, 1, 6, 7, 8, 9, 10, 11, 12]
    P.MS = 4
    P.lg_every = c1cfg.get("lg_every", 5)
    kst = lambda i: i if i < 32 else i - E
    P.tiles = lambda i: list(range(13)) if i < 32 - E else EARLY if i < 32 else LATE
    def mfma(i, j, m):
        a, b = ar(BF0 + 4 * j, 4), ar(areg(kst(i)) + 4 * m, 4)
        if j in (4, 5):
            a, b = b, a
        if c1cfg.get("nomfma"): return "s_nop 0"
        return f"v_mfma_f32_16x16x32_bf16 {acc(j,m)}, {a}, {b}, {acc(j,m)}"
    P.mfma = mfma
    g1extra = {}
    wq = list(range(3, 32)); aq_ = list(range(2, 32))
    sched1 = {}
    for i in range(0, 32 + E):
        l = []
        for rep in range(2 if i < 4 else 1):
            if wq and wq[0] <= i + DW: l.append(("W", wq.pop(0)))
            if aq_ and aq_[0] <= i + distA: l.append(("A", aq_.pop(0)))
        sched1[i] = l
    assert not wq and not aq_ and not sched1[27]
    def loads(i):
        r = []
        for kind, k in sched1[i]:
            r.append((dma(k), ("W", k)) if kind == "W" else (aload(k), ("A", k)))
            if bpf and kind == "W" and k % 4 == 0 and k >= 4:
                r.append((["buffer_load_dwordx4 a[240:243], v1, s[72:75], s76 offen",
                           f"buffer_load_dwordx4 a[244:247], v1, {srd(ST)}, s76 offen", f"s_add_u32 s76, s76, {MB}"], "bp"))
        r += g1extra.get(i, [])
        return r
    P.loads = loads
    def needs(i):
        if i == 0: return ({("A", 0)}, True)
        if i == 1: return ({("A", 1)}, True)
        if i <= 30: return ({("A", i), ("W", i + 1)}, True)
        if i == 31: return ({("A", 31)}, False)
        return (set(), False)
    P.needs = needs
    P.reads = lambda i, j: [(dsread(kst(i) + 1, j), (kst(i) + 1, j))] if kst(i) < 31 else []
    P.rneed = lambda i, j: (kst(i), j)
    TQ = [16, 20, 24, 28, 32]
    nq = [0]
    def tq():
        b = TQ[nq[0] % len(TQ)]; nq[0] += 1
        return b
    def chunks(lst, n):
        out = []; cur = []
        for k, x in enumerate(lst):
            cur.append(x)
            nxt = lst[k + 1] if k + 1 < len(lst) else ""
            glue = nxt.startswith(("s_addc", "s_subb", "s_cselect"))
            if len(cur) >= n and not glue:
                out.append((cur, "s")); cur = []
        if cur: out.append((cur, "s"))
        return out
    KS, VS, NK, NV, FKV, FKN = T[0], T[1], T[2], T[3], T[4], T[5]
    HP, HL, OB, H2, H3, H4, FHo, FOo, NG = T[6], T[7], T[8], T[9], T[10], T[11], T[12], T[13], T[14]
    pre = [f"s_lshl_b32 {KS}, {JT}, 3", f"s_add_u32 {KS}, {KS}, {MT}",
           f"s_lshl_b32 {FKV}, {KS}, 2", f"s_add_u32 {FKV}, {FKV}, {WV}", f"s_lshl_b32 {FKV}, {FKV}, 6",
           f"s_add_u32 {FKV}, {FKV}, {FKV_OFF}", f"s_sub_u32 {FKN}, {FKV}, 256",
           f"s_lshl_b32 {KS}, {KS}, 15", f"s_add_u32 {KS}, {KS}, {LW4}", f"s_add_u32 {KS}, {KS}, {WS_KV}",
           f"s_add_u32 {VS}, {KS}, 16384", f"s_sub_u32 {NK}, {KS}, 32768",
           f"v_add_u32 v37, {LW4}, v1", f"v_add_u32 v37, {KVB}, v37",
           f"v_mov_b32 v2, {fhex((32 ** -0.5) * math.log2(math.e))}",
           f"s_cmp_eq_u32 {MT}, 0", f"s_cselect_b32 {NK}, 0x40000000, {NK}", f"s_cselect_b32 {NG}, {WV}, 3", f"s_add_u32 {NV}, {NK}, 16384"]
    g1extra[27] = chunks(pre, 2)
    if c1cfg.get("lpf", True):
        g1extra[27] = [(["buffer_load_dwordx4 a[244:247], v1, s[72:75], s76 offen", f"s_add_u32 s76, s76, {MB}"], "p1") for q in range(7 - p0n)] + g1extra[27]
        if c1cfg.get("lpo", True):
            g1extra[27] += [([f"buffer_load_dwordx4 a[240:243], v1, {srd(ST)}, s77 offen", f"s_add_u32 s77, s77, {MB}"], "p1") for q in range(2)]
    hb = [f"s_lshl_b32 {HP}, {MT}, 2", f"s_add_u32 {HP}, {HP}, {WV}",
          f"s_lshl_b32 {FHo}, {HP}, 9", f"s_lshl_b32 {H2}, s3, 4", f"s_add_u32 {FHo}, {FHo}, {H2}",
          f"s_add_u32 {FOo}, {FHo}, {FO_OFF}", f"s_add_u32 {FHo}, {FHo}, {FH_OFF}",
          f"s_mul_i32 {HP}, {HP}, {2*AH_G}", f"s_add_u32 {HP}, {HP}, {WS_AH}",
          f"s_lshl_b32 {H2}, {JT}, 11", f"s_add_u32 {OB}, {HP}, {H2}", f"s_add_u32 {OB}, {OB}, {112*2048}",
          f"s_mul_i32 {H2}, s3, 7", f"s_add_u32 {H2}, {H2}, {ODD}", f"s_lshr_b32 {H2}, {H2}, 1", f"s_lshl_b32 {H2}, {H2}, 11",
          f"s_add_u32 {HP}, {HP}, {H2}", f"s_mul_i32 {H2}, {ODD}, 8184", f"s_sub_u32 {HL}, {HP}, {H2}", f"s_add_u32 {HL}, {HL}, 6144"]
    g1extra[28] = chunks(hb, 2)
    NF, NH = 28, 16
    NS = NF + NH
    T0 = 2 * NF
    RB, dA2, DW2 = 2, c2cfg["distA"], 3
    pbf = c2cfg.get("pbf", False)
    M2, N2, KSs, TA, TB = "s60", "s61", "s62", "s63", "s72"
    COL, G32, FHp, FOp, PO, PP, FPo, XO, X2, WC, PH17 = "s73", "s74", T[15], T[16], "s75", "s76", "s77", "s30", "s31", "s100", "s101"
    FPp, PO2 = "s60", "s61"
    AJ = WINC
    g2s = [
        f"s_and_b32 {M2}, s2, 3", f"s_lshl_b32 {M2}, {M2}, 2", f"s_bfe_u32 {N2}, s2, 0x20003", f"s_add_u32 {M2}, {M2}, {N2}",
        f"s_lshr_b32 {N2}, s2, 5", f"s_bfe_u32 {KSs}, s2, 0x10002",
        f"s_xor_b32 {PH}, {M2}, {N2}", f"s_and_b32 {PH}, {PH}, {3 if c2cfg.get('phase', 4) == 4 else 0}", f"s_lshl_b32 {PH17}, {PH}, 17",
        f"s_mul_i32 {TA}, {KSs}, 28", f"s_lshl_b32 {WC}, {WV}, 15", f"s_lshl_b32 {TB}, {N2}, 8", f"s_add_u32 {WC}, {WC}, {TB}",
        f"s_lshl_b32 {COL}, {KSs}, 7", f"s_add_u32 {COL}, {COL}, {TB}"]
    for u in range(4):
        g2s += [f"s_xor_b32 {TB}, {PH}, {u}", f"s_add_u32 {TB}, {TB}, {TA}", f"s_lshl_b32 {sA(u)}, {TB}, 12",
                f"s_lshl_b32 {TB}, {TB}, 17", f"s_add_u32 {sW(u)}, {TB}, {WC}"]
    g2s += [f"s_sub_u32 {TA}, 28, {TA}", f"s_lshl_b32 {AJ}, {TA}, 12",
            f"s_lshl_b32 {G32}, {M2}, 2", f"s_add_u32 {G32}, {G32}, {WV}",
            f"s_mul_i32 {TA}, {G32}, {AH_G}", f"s_add_u32 {TA}, {TA}, {WS_AH}",
            f"s_add_u32 s{SA}, s{PWS}, {TA}", f"s_addc_u32 s{SA+1}, s{PWS+1}, 0", f"s_and_b32 s{SA+1}, s{SA+1}, 0xffff",
            f"s_mov_b32 s{SA+2}, {AH_G}", f"s_mov_b32 s{SA+3}, 0x20000",
            f"s_sub_u32 s{SW}, s{PW2}, 4096", f"s_subb_u32 s{SW+1}, s{PW2+1}, 0", f"s_and_b32 s{SW+1}, s{SW+1}, 0xffff",
            f"s_mov_b32 s{SW+2}, {56*131072+4096}", f"s_mov_b32 s{SW+3}, 0x20000",
            f"s_sub_u32 s{SP}, s{PWO}, 4096", f"s_subb_u32 s{SP+1}, s{PWO+1}, 0", f"s_and_b32 s{SP+1}, s{SP+1}, 0xffff",
            f"s_mov_b32 s{SP+2}, {16*131072+4096}", f"s_mov_b32 s{SP+3}, 0x20000",
            f"s_lshr_b32 {FHp}, {G32}, 1", f"s_lshl_b32 {FHp}, {FHp}, 9", f"s_add_u32 {FOp}, {FHp}, {FO_OFF}",
            f"s_lshl_b32 {TA}, {KSs}, 8", f"s_add_u32 {FHp}, {FHp}, {TA}", f"s_add_u32 {FHp}, {FHp}, {FH_OFF}",
            f"s_lshl_b32 {TA}, s2, 2", f"s_add_u32 {TA}, {TA}, {WV}",
            f"s_lshl_b32 {PO}, {TA}, 13", f"s_add_u32 {PO}, {PO}, {WS_PART}", f"s_xor_b32 {PP}, {PO}, 0x20000",
            f"s_lshl_b32 {FPo}, {TA}, 6", f"s_add_u32 {FPo}, {FPo}, {FP_OFF}", f"s_xor_b32 {FPp}, {FPo}, 0x400",
            f"s_add_u32 {PO2}, {PO}, 4096", f"s_lshl_b32 {XO}, {G32}, 16", f"s_add_u32 {XO}, {XO}, {COL}",
            f"s_lshl_b32 {TA}, {KSs}, 7", f"s_xor_b32 {TB}, {TA}, 128", f"s_lshl_b32 {X2}, {WV}, 13"]
    cs = chunks(g2s, 2)
    n3 = (len(cs) + 2) // 3
    for q in range(3):
        g1extra[29 + q] = cs[q * n3:(q + 1) * n3]
    kv = []
    for m in range(4):
        t = tq()
        for h in range(2):
            a = accb(2 + h, m)
            kv.append(([f"v_cvt_pk_bf16_f32 v{t+2*h}, v{a}, v{a+1}", f"v_cvt_pk_bf16_f32 v{t+2*h+1}, v{a+2}, v{a+3}"], "s"))
        kv.append(([f"buffer_store_dwordx4 {vr(t,4)}, v1, {srd(SWS)}, {KS} offen offset:{1024*m} sc1"], "kv"))
        kv.append(([f"ds_write_b128 v37, {vr(t,4)} offset:{16384+1024*m}"], "lw"))
    for p in range(2):
        for tt in range(2):
            t = tq()
            for h in range(2):
                a = accb(4 + tt, 2 * p + h)
                kv.append(([f"v_cvt_pk_bf16_f32 v{t+2*h}, v{a}, v{a+1}", f"v_cvt_pk_bf16_f32 v{t+2*h+1}, v{a+2}, v{a+3}"], "s"))
            kv.append(([f"buffer_store_dwordx4 {vr(t,4)}, v1, {srd(SWS)}, {VS} offen offset:{2048*p+1024*tt} sc1"], "kv"))
            kv.append(([f"ds_write_b128 v37, {vr(t,4)} offset:{32768+16384+2048*p+1024*tt}"], "lw"))
    g1extra[32] = kv
    Q = 48
    SR, MU, MC, MX, TM = 64, 96, 100, 104, 108
    OA, LA, NM, CU, CC, SB, PB = 144, 176, 192, 112, 224, 64, 80
    KR, VR, ONES = 200, 216, 232
    DL, DH, EW, ER, XV, GV = 128, 132, 136, 138, 140, 141
    t0, t1, t2 = "v112", "v113", "v114"
    vs = [f"v_lshrrev_b32 {t0}, 3, v0", f"v_bfe_u32 {t1}, v0, 1, 2", f"v_bfe_u32 {t2}, v0, 4, 2", f"v_xor_b32 {t1}, {t1}, {t2}",
          f"v_lshlrev_b32 {t0}, 11, {t0}", f"v_lshl_add_u32 {t0}, {t1}, 5, {t0}", f"v_and_b32 {t1}, 1, v0", f"v_lshl_add_u32 {t0}, {t1}, 4, {t0}",
          f"v_add_u32 {t1}, {TA}, {t0}", f"v_add_u32 v40, 4096, {t1}", f"v_add_u32 v41, {4096+16384-1024}, {t1}",
          f"v_add_u32 {t1}, {TB}, {t0}", f"v_add_u32 v42, {4096-2048}, {t1}", f"v_add_u32 v43, {4096+16384-3072}, {t1}",
          "v_and_b32 v38, 15, v0", "v_lshlrev_b32 v38, 4, v38", "v_and_b32 v39, 31, v0", "v_lshlrev_b32 v39, 4, v39",
          f"v_lshrrev_b32 {t0}, 2, v0", f"v_and_b32 {t1}, 3, v0", f"v_lshlrev_b32 {t1}, 3, {t1}", f"v_lshl_add_u32 {t1}, {t0}, 7, {t1}",
          f"v_bfe_u32 {t0}, v0, 3, 2"]
    for t in range(4):
        vs += [f"v_xor_b32 {t2}, {t}, {t0}", f"v_lshl_add_u32 v{DL+t}, {t2}, 5, {t1}", f"v_add_u32 v{DH+t}, 0x10000, v{DL+t}"]
    vs += [f"v_and_b32 {t0}, 15, v0", f"v_lshrrev_b32 {t1}, 4, v0", f"v_lshlrev_b32 v{GV}, 3, {t1}", f"v_and_b32 {t2}, 7, v0",
           f"v_xor_b32 {t1}, {t1}, {t2}", f"v_lshlrev_b32 {t0}, 8, {t0}", f"v_add_u32 {t0}, {X2}, {t0}",
           f"v_lshl_add_u32 v{EW}, {t1}, 4, {t0}", f"v_xor_b32 {t1}, 4, {t1}", f"v_lshl_add_u32 v{EW+1}, {t1}, 4, {t0}",
           f"v_lshrrev_b32 {t0}, 3, v0", f"v_lshlrev_b32 {t1}, 1, {t2}", f"v_xor_b32 {t1}, {t1}, {t0}",
           f"v_lshlrev_b32 v{XV}, 11, {t0}", f"v_lshl_add_u32 v{XV}, {t2}, 4, v{XV}",
           f"v_lshlrev_b32 {t0}, 8, {t0}", f"v_add_u32 {t0}, {X2}, {t0}",
           f"v_lshl_add_u32 v{ER}, {t1}, 4, {t0}", f"v_xor_b32 {t1}, 1, {t1}", f"v_lshl_add_u32 v{ER+1}, {t1}, 4, {t0}"]
    g1extra[33] = chunks(vs, 2)
    ms = [([f"v_and_b32 {t0}, 15, v0", f"v_lshrrev_b32 {t1}, 4, v0"], "s"), ([f"v_lshlrev_b32 {t1}, 2, {t1}", f"v_mov_b32 {t2}, {fhex(NEG)}"], "s")]
    for r in range(4):
        ms.append(([f"v_add_u32 v115, {r}, {t1}", f"v_cmp_lt_u32 vcc, {t0}, v115"], "s"))
        ms.append(([f"v_mov_b32 v{MX+r}, {t2}"], "s"))
        ms.append(([f"v_cndmask_b32_e64 v{MU+r}, {t2}, 0, vcc", f"v_cndmask_b32_e64 v{MC+r}, 0, {t2}, vcc"], "s"))
    ms.append((["v_mov_b32 v115, 0x3f803f80", "v_add_u32 v36, 12288, v37"], "s"))
    for r in range(0, 4, 2):
        ms.append(([f"v_accvgpr_write_b32 a{ONES+r}, v115", f"v_accvgpr_write_b32 a{ONES+r+1}, v115"], "s"))
    g1extra[34] = ms
    ql = []
    for m in range(4):
        d = accb(0, m)
        for h in range(2):
            a = accb(h, m)
            ql.append(([f"v_mul_f32 v{a}, v2, v{a}", f"v_mul_f32 v{a+1}, v2, v{a+1}"], "s"))
            ql.append(([f"v_mul_f32 v{a+2}, v2, v{a+2}", f"v_mul_f32 v{a+3}, v2, v{a+3}"], "s"))
            ql.append(([f"v_cvt_pk_bf16_f32 v{d+2*h}, v{a}, v{a+1}", f"v_cvt_pk_bf16_f32 v{d+2*h+1}, v{a+2}, v{a+3}"], "s"))
    g1extra[36] = ql
    P.cand = lambda i: list(range(12, 36)) if i == 36 else None
    LS = 3
    P.run(0, LS)
    P.loop(LS, LS + 24, 12, "L_g1_loop", CNT)
    fl_at, poll_at, chk_at = c1cfg.get("fl_at", -2), c1cfg.get("poll_at", 0), c1cfg.get("chk_at", 3)
    state = dict(released=False)
    def events(pos):
        if pos == fl_at:
            P.vwait({"kv"})
            flag_store(A, P, FKV)
        if pos == poll_at:
            poll_issue(P, 34, f"v{VZ}", FKN, "pkv")
        if pos == chk_at:
            A(f"s_cmp_eq_u32 {MT}, 0")
            A("s_cbranch_scc1 L_pkv_ok")
            poll_check(A, P, 34, f"v{VZ}", FKN, "pkv", "L_pkv")
            A(f"s_add_u32 m0, {LW4}, {KVB}")
            A("s_nop 0")
            P.emit([f"buffer_load_dwordx4 v1, {srd(SWS)}, {NK} offen offset:{1024*p} sc1 lds" for p in range(4)], "nk")
            A(f"s_add_u32 m0, {LW4}, {KVB+32768}")
            A("s_nop 0")
            P.emit([f"buffer_load_dwordx4 v1, {srd(SWS)}, {NV} offen offset:{1024*p} sc1 lds" for p in range(4)], "nv")
            state["released"] = True
    for i in range(LS + 24, 32 + E):
        events(i - (32 + E))
        P.step(i)
    P.cand = None
    stamp(A)

    hfl = "sc1"
    c1 = -2.0 * math.sqrt(2.0 / math.pi) * math.log2(math.e)
    c2 = c1 * 0.044715
    A(f"v_mov_b32 v2, {fhex(c1)}")
    A(f"v_mov_b32 v4, {fhex(c2)}")
    E0 = 64
    def gelu_quad(a, e):
        for h in (0, 2):
            A(f"v_pk_mul_f32 {vr(e+h,2)}, {vr(a+h,2)}, {vr(a+h,2)}")
        for h in (0, 2):
            A(f"v_pk_fma_f32 {vr(e+h,2)}, {vr(e+h,2)}, v[4:5], v[2:3] op_sel_hi:[1,0,0]")
        for h in (0, 2):
            A(f"v_pk_mul_f32 {vr(e+h,2)}, {vr(e+h,2)}, {vr(a+h,2)}")
        for r in range(4):
            A(f"v_exp_f32 v{e+r}, v{e+r}")
        for h in (0, 2):
            A(f"v_pk_add_f32 {vr(e+h,2)}, {vr(e+h,2)}, 1.0 op_sel_hi:[1,0]")
        for r in range(4):
            A(f"v_rcp_f32 v{e+r}, v{e+r}")
        for h in (0, 2):
            A(f"v_pk_mul_f32 {vr(a+h,2)}, {vr(a+h,2)}, {vr(e+h,2)}")
    def h_store(m, i):
        if i < 3:
            return [f"s_add_u32 {H2}, {HP}, {(m>>1)*AH_G + i*2048}",
                    f"buffer_store_dwordx4 {acc(6+2*i,m)}, v1, {srd(SWS)}, {H2} offen offset:{(m&1)*1024} {hfl}"]
        return [f"s_add_u32 {H2}, {HL}, {(m>>1)*AH_G}",
                f"buffer_store_dwordx2 {vr(accb(12,m),2)}, v1, {srd(SWS)}, {H2} offen offset:{(m&1)*1024} {hfl}"]
    side = []
    unit = 0
    hevery = c1cfg.get("hevery", 2)
    for i in range(4):
        for m in range(4):
            events(unit)
            t = accb(6 + 2 * i, m)
            for h in range(2 if i < 3 else 1):
                a = accb(6 + 2 * i + h, m)
                gelu_quad(a, E0 + 4 * h)
                A(f"v_cvt_pk_bf16_f32 v{t+2*h}, v{a}, v{a+1}")
                A(f"v_cvt_pk_bf16_f32 v{t+2*h+1}, v{a+2}, v{a+3}")
                if state["released"] and side and h == 0 and (unit - chk_at) % hevery == 0:
                    P.emit(side.pop(0), "h")
            side.append(h_store(m, i))
            unit += 1
    stamp(A)
    P.vwait({"nv"})
    A("s_waitcnt lgkmcnt(0)")
    A("s_barrier")
    stamp(A)
    kq = lambda i: ar(KR + 4 * i, 4)
    qq = lambda s_: vr(Q + 4 * s_, 4)
    for i in (3, 2, 1, 0):
        A(f"ds_read_b128 {kq(i)}, v37 offset:{16384+1024*i}")
    def sidework():
        P.emit(side.pop(0), "h")
    def phaseA(items, slots, pend, reload, first_wait, sprinkle=False):
        pend = list(pend)
        last_i = None
        for n, (i, s_, c) in enumerate(items):
            if i != last_i:
                A(f"s_waitcnt lgkmcnt({first_wait(i)})")
                last_i = i
            A(f"v_mfma_f32_16x16x32_bf16 {vr(SR+4*slots[n],4)}, {kq(i)}, {qq(s_)}, {c}")
            if reload and (n + 1 == len(items) or items[n + 1][0] != i):
                A(f"ds_read_b128 {kq(i)}, v36 offset:{1024*i}")
            if sprinkle:
                if side and n % c1cfg.get('aev', 10) == 0: sidework()
                if n < 4: A("s_nop 1")
            pend.append((slots[n], s_))
            if len(pend) > 3:
                sl, ps = pend.pop(0)
                A(f"v_max3_f32 v{MX+ps}, v{MX+ps}, v{SR+4*sl}, v{SR+4*sl+1}")
                A(f"v_max3_f32 v{MX+ps}, v{MX+ps}, v{SR+4*sl+2}, v{SR+4*sl+3}")
        return pend
    def drainA(pend):
        A("s_nop 7")
        for sl, ps in pend:
            A(f"v_max3_f32 v{MX+ps}, v{MX+ps}, v{SR+4*sl}, v{SR+4*sl+1}")
            A(f"v_max3_f32 v{MX+ps}, v{MX+ps}, v{SR+4*sl+2}, v{SR+4*sl+3}")
    g4 = [(i, s_, vr(MC, 4) if s_ == i else "0") for i in (3, 2, 1, 0) for s_ in range(i, 4)]
    pend = phaseA(g4, [0, 1, 2, 3, 4, 0, 1, 5, 6, 7], [], True, lambda i: 3, sprinkle=True)
    PEND = [(5, 1), (6, 2), (7, 3)]
    assert pend == PEND
    A(f"s_mov_b32 {CNT}, {NG}")
    A(f"s_cmp_eq_u32 {NG}, 0")
    A("s_cbranch_scc1 L_atA_exit")
    A.label("L_atA_loop")
    A("v_subrev_u32 v36, 4096, v36")
    full = [(i, s_, "0") for i in (3, 2, 1, 0) for s_ in range(4)]
    pend = phaseA(full, [n % 8 for n in range(16)], PEND, True, lambda i: 3)
    A(f"s_sub_u32 {CNT}, {CNT}, 1")
    A(f"s_cmp_lg_u32 {CNT}, 0")
    A("s_cbranch_scc1 L_atA_loop")
    A(f"s_cmp_eq_u32 {MT}, 0")
    A("s_cbranch_scc1 L_atA_exit")
    g0 = [(i, s_, vr(MU, 4) if s_ == i else "0") for i in (3, 2, 1, 0) for s_ in range(0, i + 1)]
    pend0 = phaseA(g0, [n % 8 for n in range(10)], PEND, False, lambda i: i)
    drainA(pend0)
    A("s_branch L_atA_done")
    A.label("L_atA_exit")
    drainA(PEND)
    A.label("L_atA_done")
    if c1cfg.get("fine2"): stamp(A)
    while len(side) > c1cfg.get("hleft", 7):
        sidework()
    assert len(side) <= 8
    A("s_waitcnt lgkmcnt(0)")
    for i in (3, 2, 1, 0):
        A(f"ds_read_b128 {kq(i)}, v37 offset:{16384+1024*i}")
    vq = lambda i: ar(VR + 4 * i, 4)
    for i in (2, 3, 0, 1):
        A(f"ds_read_b128 {vq(i)}, v37 offset:{32768+16384+1024*i}")
    A("v_add_u32 v36, 12288, v37")
    for sw in ("v_permlane32_swap_b32", "v_permlane16_swap_b32"):
        for s_ in range(4):
            A(f"v_mov_b32 v{TM+s_}, v{MX+s_}")
        for s_ in range(4):
            A(f"{sw} v{MX+s_}, v{TM+s_}")
        for s_ in range(4):
            A(f"v_max_f32 v{MX+s_}, v{MX+s_}, v{TM+s_}")
    for s_ in (2, 3, 0, 1):
        for r in range(4):
            A(f"v_sub_f32 v{NM+4*s_+r}, 0, v{MX+s_}")
            A(f"v_sub_f32 v{CC+4*s_+r}, v{MC+r}, v{MX+s_}")
    for s_ in range(4):
        for r in range(4):
            A(f"v_sub_f32 v{CU+4*s_+r}, v{MU+r}, v{MX+s_}")

    BF2 = 128
    RNG = 65536
    areg2 = lambda t: (((t >> 1) % 4) * 16 + (t & 1) * 8) if t < T0 else ((t - T0 + 8) % 16) * 8
    hbase = lambda hs: hs * 8192
    acc2b = lambda j, m: 64 + (j * 2 + m) * 4
    acc2 = lambda j, m: vr(acc2b(j, m), 4)
    def aload2(c, half):
        u = c % 4
        l = []
        if NF <= c < NF + 4 and half == 0:
            l.append(f"s_add_u32 {sA(u)}, {sA(u)}, {AJ}")
        l += [f"buffer_load_dwordx4 {ar(areg2(2*c+half)+4*m,4)}, v1, {srd(SA)}, {sA(u)} offen offset:{2048*half+1024*m} {c2cfg.get('afl','sc1')}" for m in range(2)]
        if half == 1:
            l.append(f"s_add_u32 {sA(u)}, {sA(u)}, 16384")
        return l
    def dma2(c, half):
        u = c % 4
        l = []
        if c < NF:
            if half == 0:
                l += [f"s_add_u32 m0, {LW4}, {RNG + u*STG}", "s_nop 0"]
            l += [f"buffer_load_dwordx4 v{40+p}, {srd(SW)}, {sW(u)} offen offset:{1024*p} lds" for p in ((0, 1) if half == 0 else (2, 3))]
            if half == 1:
                l.append(f"s_add_u32 {sW(u)}, {sW(u)}, {4*131072}")
            return l
        hs = c - NF
        if half == 0:
            l += [f"s_add_u32 m0, {LW2}, {hbase(hs)}", f"s_xor_b32 {PINC}, {PH17}, {hs << 17}", f"s_add_u32 {PINC}, {PINC}, {WC}"]
        l.append(f"buffer_load_dwordx4 v{40+half}, {srd(SP)}, {PINC} offen offset:{1024*half} lds")
        return l
    BB, BQ, XB, XU, PBf = 8, 240, 112, 144, 192
    XB = 16
    early2 = [(dma2(c, h), ("W", c)) for c in range(2) for h in range(2)]
    early2.append(([f"s_mov_b32 s{ST}, s{PB2}", f"s_and_b32 s{ST+1}, s{PB2+1}, 0xffff", f"s_mov_b32 s{ST+2}, 2048", f"s_mov_b32 s{ST+3}, 0x20000"]
                   + [f"buffer_load_dwordx2 {vr(BB+2*j,2)}, v{GV}, {srd(ST)}, {COL} offen offset:{32*j}" for j in range(4)], "b2"))
    xl = [f"s_mov_b32 s{ST}, s{PX}", f"s_and_b32 s{ST+1}, s{PX+1}, 0xffff", f"s_mov_b32 s{ST+2}, {4*MB}", f"s_mov_b32 s{ST+3}, 0x20000"]
    for q in range(4):
        xl += [f"s_add_u32 {X2}, {XO}, {16384*q}", f"buffer_load_dwordx4 {vr(XB+4*q,4)}, v{XV}, {srd(ST)}, {X2} offen"]
    early2.append((xl, "x"))
    NPRE = c2cfg.get("npre", 8)
    late2 = [(dma2(NF + hs, 0) + dma2(NF + hs, 1), ("W", NF + hs)) for hs in range(NPRE)]

    nm = lambda s_: vr(NM + 4 * s_, 4)
    def unit_(p, s_, kind):
        c = []
        for h in range(2):
            i = 2 * p + h
            if kind == "full":
                c.append(nm(s_))
            elif kind == "g4":
                c.append(None if i > s_ else vr(CC + 4 * s_, 4) if i == s_ else nm(s_))
            else:
                c.append(None if i < s_ else vr(CU + 4 * s_, 4) if i == s_ else nm(s_))
        return dict(p=p, s=s_, c=c)
    seen = set()
    def qk_list(u, par):
        return [f"v_mfma_f32_16x16x32_bf16 {vr(SB+8*par+4*h,4)}, {kq(2*u['p']+h)}, {qq(u['s'])}, {u['c'][h]}" for h in range(2) if u['c'][h]]
    def pv_list(u, par, first=False):
        s_ = u['s']; p_ = vr(PB + 4 * par, 4); l = []
        for t in range(2):
            o = vr(OA + (s_ * 2 + t) * 4, 4)
            l.append(f"v_mfma_f32_16x16x32_bf16 {o}, {vq(2*u['p']+t)}, {p_}, {'0' if first else o}")
        o = vr(LA + 4 * s_, 4)
        l.append(f"v_mfma_f32_16x16x32_bf16 {o}, {ar(ONES,4)}, {p_}, {'0' if first else o}")
        return l
    def block(cur, par, qk, pv, after_qk=(), after_pv=(), pre=()):
        ex = [f"v_exp_f32 v{SB+8*par+4*h+r}, v{SB+8*par+4*h+r}" for h in range(2) if cur['c'][h] for r in range(4)]
        cv = []
        for h in range(2):
            d = PB + 4 * par + 2 * h; a = SB + 8 * par + 4 * h
            if cur['c'][h]:
                cv += [f"v_cvt_pk_bf16_f32 v{d}, v{a}, v{a+1}", f"v_cvt_pk_bf16_f32 v{d+1}, v{a+2}, v{a+3}"]
            else:
                cv += [f"v_mov_b32 v{d}, 0", f"v_mov_b32 v{d+1}, 0"]
        for l in pre:
            A(l)
        mf = [(m_, "q") for m_ in qk] + [(m_, "p") for m_ in pv]
        for k, (m_, kind) in enumerate(mf):
            A(m_)
            if kind == "q" and k == len(qk) - 1:
                for l in after_qk: A(l)
            if kind == "p" and k == len(mf) - 2:
                for l in after_pv: A(l)
            for _ in range(2):
                if ex: A(ex.pop(0))
        for e in ex: A(e)
        for c_ in cv: A(c_)
    krl = lambda p: [f"ds_read_b128 {kq(2*p+1)}, v36 offset:{1024*(2*p+1)}", f"ds_read_b128 {kq(2*p)}, v36 offset:{1024*(2*p)}"]
    vrl = lambda p, adj: [f"ds_read_b128 {vq(2*p+t)}, v36 offset:{32768+adj+1024*(2*p+t)}" for t in range(2)]
    FIRSTU = unit_(1, 0, "full")
    LASTU = unit_(0, 3, "full")
    def group(units, entry_prev, nxt_first, reload, firsts=False, v_adj_entry=4096, mem=None, per=1):
        n = len(units)
        for k, u in enumerate(units):
            par = k & 1
            nx = units[k + 1] if k + 1 < n else nxt_first
            pvu = units[k - 1] if k > 0 else entry_prev
            qk = qk_list(nx, par ^ 1) if nx else []
            pv = []
            if pvu:
                fst = firsts and k > 0 and pvu['s'] not in seen
                seen.add(pvu['s'])
                pv = pv_list(pvu, par ^ 1, fst)
            aq, ap, pre = [], [], ["s_waitcnt lgkmcnt(2)" if reload or k < 2 else "s_waitcnt lgkmcnt(0)"]
            if not qk:
                pre.append("s_nop 0")
            if reload and k + 1 < n and (k + 2 == n or units[k + 2]['p'] != nx['p']):
                aq = krl(nx['p'])
            if pvu and k > 0 and u['p'] != pvu['p'] and reload:
                ap = vrl(pvu['p'], 0)
            if k == 0 and entry_prev is not None:
                ap = vrl(0, v_adj_entry)
            for _ in range(per):
                if mem:
                    P.emit(*mem.pop(0))
            block(u, par, qk, pv, aq, ap, pre)
    u4 = [unit_(1, 2, "g4"), unit_(1, 3, "g4")] + [unit_(0, s_, "g4") for s_ in range(4)]
    if c1cfg.get("fine2"): stamp(A)
    NOP = ([], "s")
    def spread(items, nblk, every):
        out = []
        for k in range(nblk):
            out.append(items.pop(0) if (items and k % every == 0) else NOP)
        return out
    hs_ = [(x, "h") for x in side]
    bev = c1cfg.get("bev", 2)
    M0 = spread(hs_, 6, bev)
    M1 = spread(hs_, 8, bev)
    fh_it = c1cfg.get("fh_it", 2)
    pfh_ = ([f"buffer_load_dwordx2 v[2:3], v38, {srd(SWS)}, {FHp} offen sc1"], "pfh")
    rest = hs_ + early2
    M2_ = (rest[:8] + [NOP] * 8)[:8]
    rest = rest[8:]
    assert len(rest) <= 5 and (not hs_ or fh_it >= 2)
    M3 = (rest + [NOP] * 8)[:c1cfg.get("pfh_k", 6)] + [pfh_]
    MS_ = [M1, M2_, M3]
    A("s_waitcnt lgkmcnt(6)")
    for l in qk_list(u4[0], 0): A(l)
    A("s_nop 7")
    group(u4, None, FIRSTU, True, firsts=True, mem=M0)
    if c1cfg.get("fine2"): stamp(A)
    uf = [unit_(p, s_, "full") for p in (1, 0) for s_ in range(4)]
    def post(it):
        if it == fh_it:
            P.vwait({"h"})
            flag_store(A, P, FHo)
    logs = []
    for it in (1, 2, 3):
        logs.append(list(P.vlog))
        A(f"s_cmp_lt_u32 {NG}, {it}")
        A(f"s_cbranch_scc1 L_atB_skip{it}")
        A("v_subrev_u32 v36, 4096, v36")
        group(uf, LASTU, FIRSTU, True, mem=list(MS_[it - 1]))
        post(it)
    A("s_branch L_atB_x1")
    vend = list(P.vlog)
    P.vlog = logs[0]
    for it in (1, 2, 3):
        A.label(f"L_atB_skip{it}")
        assert P.vlog == logs[it - 1]
        for x in MS_[it - 1]: P.emit(*x)
        post(it)
    assert P.vlog == vend
    A.label("L_atB_x1")
    stamp(A)
    poll_check(A, P, 2, "v38", FHp, "pfh", "L_pfh")
    stamp(A)
    P.vlog = []
    first2 = [(aload2(t >> 1, t & 1), ("A", t)) for t in range(2 * dA2)]
    for x in first2[:2]: P.emit(*x)
    memB = first2[2:] + late2
    for j in range(4):
        for k_, (op, src) in enumerate((("v_lshlrev_b32 v{d}, 16, v{s}", 0), ("v_and_b32 v{d}, 0xffff0000, v{s}", 0), ("v_lshlrev_b32 v{d}, 16, v{s}", 1), ("v_and_b32 v{d}, 0xffff0000, v{s}", 1))):
            A(op.format(d=BQ + 4 * j + k_, s=BB + 2 * j + src))
    A(f"s_cmp_eq_u32 {MT}, 0")
    A("s_cbranch_scc1 L_atB_exit")
    vsave = list(P.vlog)
    u0 = [unit_(1, s_, "g0") for s_ in range(4)] + [unit_(0, 0, "g0"), unit_(0, 1, "g0")]
    mb = list(memB)
    group(u0, LASTU, None, False, v_adj_entry=0, mem=mb, per=2)
    assert not mb
    A("s_waitcnt lgkmcnt(0)")
    A("s_nop 0")
    for l in pv_list(u0[-1], 1): A(l)
    A("s_branch L_atB_done")
    A.label("L_atB_exit")
    v1_ = list(P.vlog)
    P.vlog = vsave
    for l in pv_list(LASTU, 1): A(l)
    for x in memB: P.emit(*x)
    A("s_waitcnt lgkmcnt(0)")
    assert P.vlog == v1_
    A.label("L_atB_done")
    A("s_barrier")
    P.llog = []
    def dsread2(t, j):
        b = BF2 + ((t % RB) * 8 + j) * 4
        if t < T0:
            o = ((t >> 1) % 4) * STG + (t & 1) * 8192 + (j >> 2) * 2048
            return [f"ds_read_b64_tr_b16 {ar(b,2)}, v{DH+(j&3)} offset:{o}",
                    f"ds_read_b64_tr_b16 {ar(b+2,2)}, v{DH+(j&3)} offset:{o+4096}"]
        o = hbase((t >> 1) - NF) + (t & 1) * 4096
        vb = (DH if o >= 65536 else DL) + j
        o &= 65535
        return [f"ds_read_b64_tr_b16 {ar(b,2)}, v{vb} offset:{o}",
                f"ds_read_b64_tr_b16 {ar(b+2,2)}, v{vb} offset:{o+2048}"]
    for h in range(2):
        P.emit(dma2(2, h), ("W", 2))
    for t in range(RB):
        for j in range(8):
            P.emit(dsread2(t, j), (t, j))
    A(f"s_add_u32 {H2}, {OB}, {AH_G}")
    for s_ in range(4):
        A(f"v_rcp_f32 v{4+(s_&1)*2}, v{LA+4*s_}")
        A("s_nop 0")
        d = OA + s_ * 8
        for t in range(2):
            o = OA + (s_ * 2 + t) * 4
            for e in (0, 2):
                A(f"v_pk_mul_f32 {vr(o+e,2)}, {vr(o+e,2)}, {vr(4+(s_&1)*2,2)} op_sel_hi:[1,0]")
            A(f"v_cvt_pk_bf16_f32 v{d+2*t}, v{o}, v{o+1}")
            A(f"v_cvt_pk_bf16_f32 v{d+2*t+1}, v{o+2}, v{o+3}")
        P.emit([f"buffer_store_dwordx4 {vr(d,4)}, v1, {srd(SWS)}, {OB if s_ < 2 else H2} offen offset:{1024*(s_&1)} sc1"], "o")
    stamp(A)

    P.MS = 2
    P.lg_every = c2cfg.get("lg_every", 4)
    ntl = lambda i: 8 if i < T0 else 4
    P.tiles = lambda i: list(range(ntl(i)))
    def mfma2(i, j, m):
        c = acc2(j, m) if i > 0 else (vr(BQ + 4 * j, 4) if j < 4 else "0")
        return f"v_mfma_f32_16x16x32_bf16 {acc2(j,m)}, {ar(BF2+((i%RB)*8+j)*4,4)}, {ar(areg2(i)+4*m,4)}, {c}"
    P.mfma = mfma2
    extra = {}
    RATE = c2cfg.get("rate", 16)
    def normal(i):
        r = []
        q, sub = (i + RB) // 2, (i + RB) % 2
        c = q + DW2 - 1
        if 0 <= c < NF or (NF + NPRE <= c < NF + 8):
            r.append(("W", c, sub))
        t = i + 2 * dA2
        if 0 <= t < 2 * NS:
            r.append(("A", t))
        return r
    done = set(("W", NF + hs, h) for hs in range(NPRE) for h in range(2))
    for i in range(-20, T0):
        done.update(normal(i))
    pend2 = [("W", c, h) for c in range(NF, NS) for h in range(2)] + [("A", t) for t in range(T0, 2 * NS)]
    pend2 = [x for x in pend2 if x not in done]
    pend2.sort(key=lambda x: (2 * x[1] - RB - 1 + 0.1 * x[2]) if x[0] == "W" else x[1])
    def legal(x, i):
        if x[0] == "W":
            return True
        return x[1] - T0 < 8 or x[1] - 16 < i
    sched = {}
    def make_sched():
        for i in range(T0, 2 * NS):
            n = sum(1 for l, _ in extra.get(i, []) for z in l if isvm(z))
            sched[i] = []
            while pend2 and n < RATE:
                cand = [x for x in pend2 if legal(x, i)]
                if not cand:
                    break
                x = cand[0]
                pend2.remove(x); sched[i].append(x)
                n += 1 if x[0] == "W" else 2
        assert not pend2
    def loads2(i):
        r = list(extra.get(i, []))
        for x in (normal(i) if i < T0 else sched[i]):
            if x[0] == "W":
                r.append((dma2(x[1], x[2]), ("W", x[1])))
            else:
                r.append((aload2(x[1] >> 1, x[1] & 1), ("A", x[1])))
        return r
    P.loads = loads2
    def needs2(i):
        tags = {("A", i)}
        c = (i + RB) // 2
        bar = (i + RB) % 2 == 0 and c < NS
        if bar and NF + 1 < c < NF + NPRE:
            bar = False
        if bar and c >= 2 and not (NF <= c < NF + NPRE):
            tags.add(("W", c))
        return tags, bar
    P.needs = needs2
    P.reads = lambda i, j: [(dsread2(i + RB, j), (i + RB, j))] if (i + RB < 2 * NS and j < ntl(i + RB)) else []
    P.rneed = lambda i, j: (i, j)
    fl2, poll2, chk2 = c2cfg.get("fl_at", 4), c2cfg.get("poll_at", 17), c2cfg.get("chk_at", 20)
    if not pbf:
        st = [f"buffer_store_dwordx4 {acc2(4+q//2, q%2)}, v1, {srd(SWS)}, {PO if q < 4 else PO2} offen offset:{1024*(q%4)} sc1" for q in range(8)]
        extra[T0] = [(st[:4], "ps")]
        extra[T0 + 1] = [(st[4:], "ps")]
        pl = [f"buffer_load_dwordx4 {vr(PBf+4*q,4)}, v1, {srd(SWS)}, {PP if q < 4 else PO2} offen offset:{1024*(q%4)} sc1" for q in range(8)]
        for q in range(2):
            extra[T0 + chk2 + q] = [(pl[4*q:4*q+4], "pl")]
    else:
        for hh in range(2):
            l = []
            for j in (4 + 2 * hh, 5 + 2 * hh):
                d = acc2b(j, 0)
                l.append(([f"v_cvt_pk_bf16_f32 v{d}, v{d}, v{d+1}", f"v_cvt_pk_bf16_f32 v{d+1}, v{d+2}, v{d+3}",
                           f"v_cvt_pk_bf16_f32 v{d+2}, v{d+4}, v{d+5}", f"v_cvt_pk_bf16_f32 v{d+3}, v{d+6}, v{d+7}",
                           f"buffer_store_dwordx4 {vr(d,4)}, v1, {srd(SWS)}, {PO} offen offset:{1024*(j-4)} sc1"], "ps"))
            extra[T0 + hh] = l
        extra[T0 + chk2] = [([f"buffer_load_dwordx4 {vr(224+4*q,4)}, v1, {srd(SWS)}, {PP} offen offset:{1024*q} sc1" for q in range(4)], "pl")]
    xu = []
    for q in range(4):
        for d in range(4):
            xu.append(([f"v_lshlrev_b32 v{XU+8*q+2*d}, 16, v{XB+4*q+d}", f"v_and_b32 v{XU+8*q+2*d+1}, 0xffff0000, v{XB+4*q+d}"], "s"))
    extra[4] = xu[:8]; extra[5] = xu[8:]
    make_sched()
    P.run(0, 7)
    P.vwait({"o"})
    flag_store(A, P, FOo, counted=False)
    P.run(7, 8)
    P.loop(8, T0 - 16, 8, "L_g2_loop", CNT)
    P.run(T0 - 16, T0 - 12)
    poll_issue(P, 10, "v39", FOp, "pfo")
    P.run(T0 - 12, T0 - 2 * dA2)
    poll_check(A, P, 10, "v39", FOp, "pfo", "L_pfo")
    P.run(T0 - 2 * dA2, T0)
    stamp(A)
    P.run(T0, T0 + fl2)
    P.vwait({"ps"})
    flag_store(A, P, FPo)
    stamp(A)
    P.run(T0 + fl2, T0 + poll2)
    poll_issue(P, 10, f"v{VZ}", FPp, "pp")
    P.run(T0 + poll2, T0 + chk2)
    poll_check(A, P, 10, f"v{VZ}", FPp, "pp", "L_pp")
    A(f"s_add_u32 {PO2}, {PP}, 4096")
    P.run(T0 + chk2, 2 * NS)
    stamp(A)
    psrd(A, ST, POUT, 4 * MB)
    A("s_waitcnt vmcnt(0)")
    if pbf:
        for q in range(4):
            for d in range(4):
                A(f"v_lshlrev_b32 v{PBf+8*q+2*d}, 16, v{224+4*q+d}")
                A(f"v_and_b32 v{PBf+8*q+2*d+1}, 0xffff0000, v{224+4*q+d}")
    else:
        A("s_nop 3")
    for q in range(8):
        j, m = q // 2, q % 2
        a = acc2b(j, m)
        for e in (0, 2):
            A(f"v_pk_add_f32 {vr(a+e,2)}, {vr(a+e,2)}, {vr(PBf+4*q+e,2)}")
        A(f"ds_write_b128 v{EW+(j&1)}, {vr(a,4)} offset:{m*4096 + (j>>1)*128}")
    A("s_waitcnt lgkmcnt(0)")
    for q in range(4):
        A(f"ds_read_b128 {vr(PBf+8*q,4)}, v{ER} offset:{q*2048}")
        A(f"ds_read_b128 {vr(PBf+8*q+4,4)}, v{ER+1} offset:{q*2048}")
    for q in range(4):
        A(f"s_add_u32 {X2}, {XO}, {16384*q}")
        A(f"s_waitcnt lgkmcnt({6-2*q})")
        for d in range(4):
            A(f"v_pk_add_f32 {vr(PBf+8*q+2*d,2)}, {vr(PBf+8*q+2*d,2)}, {vr(XU+8*q+2*d,2)}")
        for d in range(4):
            A(f"v_cvt_pk_bf16_f32 v{XB+4*q+d}, v{PBf+8*q+2*d}, v{PBf+8*q+2*d+1}")
        A(f"buffer_store_dwordx4 {vr(XB+4*q,4)}, v{XV}, {srd(ST)}, {X2} offen {c2cfg.get('ofl','sc1')}")
    stamp(A)
    stamp_out(A)
    A.label("L_end")
    A("s_endpgm")
    return kernel_desc(NAME, 512, 102, 256)

try:
    HEADER = open("parallel_sum__sliding_block__dense_activation_gelu__prompt.s.ref").read().split("; Override")[0]
except Exception:
    HEADER = ""

def build(cfg, aslist=False):
    A = Asm()
    d = gen(A, cfg)
    out = HEADER
    out += f"; @launch {'kernel=' + NAME + ' ' if aslist else ''}grid=(256,1,1) block=(256,1,1) lds=163840\n"
    out += '.amdgcn_target "amdgcn-amd-amdhsa--gfx950"\n.text\n'
    out += A.text()
    out += '.section .rodata,"a"\n' + d
    return out

DEFAULT = dict(g1=dict(distA=5, DW=5, map='b', phase=4, hleft=5, aev=4, fh_it=1), g2=dict(distA=3))

if __name__ == "__main__":
    out = sys.argv[1] if len(sys.argv) > 1 else "parallel_sum__sliding_block__dense_activation_gelu__prompt.s"
    open(out, "w").write(build(DEFAULT))
    print("wrote", out, "stamps", nst[0])
```
